```python
import torch

def _softmax(x, axis=-1):
    return torch.softmax(x, dim=axis)
def _gelu(x):
    return torch.nn.functional.gelu(x, approximate="tanh")
def _silu(x):
    return torch.nn.functional.silu(x)
def _sigmoid(x):
    return torch.sigmoid(x)
def _layernorm(x, axis=-1, eps=1e-5):
    m = x.mean(dim=axis, keepdim=True)
    v = x.var(dim=axis, keepdim=True, unbiased=False)
    return (x - m) / torch.sqrt(v + eps)
def _scatter_add(tgt, idx, src, axis=0):
    return tgt.clone().index_add_(axis, idx, src)
def _segment_sum(src, seg, n):
    out = torch.zeros((n,) + src.shape[1:], dtype=src.dtype)
    return out.index_add_(0, seg, src)
def _pad(x, pw):
    flat = tuple(v for pair in reversed(pw) for v in pair)
    return torch.nn.functional.pad(x, flat)

kernel_name = 'standalone__mha_block_cached__near_ridge'

def setup_inputs():

    _w = (lambda a: (lambda t: t.to(torch.bfloat16) if t.is_floating_point() else t)(torch.as_tensor(a)))
    B, Sq, D = 8, 128, 448
    H, Sk, Dh = 16, 512, 256
    return {
        "x": _w((lambda *s: torch.randn(*s, dtype=torch.bfloat16) * 0.8)(B, Sq, D)),
        "k_cache": _w((lambda *s: torch.randn(*s, dtype=torch.bfloat16) * 0.8)(B, H, Sk, Dh)),
        "v_cache": _w((lambda *s: torch.randn(*s, dtype=torch.bfloat16) * 0.05)(B, H, Sk, Dh)),
        "wq": _w((lambda *s: torch.randn(*s, dtype=torch.bfloat16) * 0.8)(D, H * Dh) * (D ** -0.5)),
        "wo": _w((lambda *s: torch.randn(*s, dtype=torch.bfloat16) * 0.05)(H * Dh, D) * ((H * Dh) ** -0.5)),
    }

def reference(x, k_cache, v_cache, wq, wo):
    B, Sq, D = x.shape
    H, Dh = 16, 256
    q = (lambda x, *d: x.permute(*d))((x @ wq).reshape(B, Sq, H, Dh), 0, 2, 1, 3)
    scores = torch.einsum("bhqd,bhkd->bhqk", q, k_cache) * (Dh ** -0.5)
    p = _softmax(scores, axis=-1)
    o = torch.einsum("bhqk,bhkd->bhqd", p, v_cache)
    return (lambda x, *d: x.permute(*d))(o, 0, 2, 1, 3).reshape(B, Sq, H * Dh) @ wo
```

```python
import struct, sys

OUT = "standalone__mha_block_cached__near_ridge.s"
NAME = "standalone__mha_block_cached__near_ridge"

L = []
def e(s): L.append("    " + s)
def lab(s): L.append(s + ":")
def cm(s): L.append("    ; " + s)

def f32bits(x): return struct.unpack("<I", struct.pack("<f", x))[0]

RING = 24576
SH = 4 * RING
LDS_TOTAL = 163840

sX, sK, sV, sWQ, sWO, sWS = 20, 24, 28, 32, 36, 40
sW = 44
sRing = 45
sXb, sWQb, sKb, sVb, sWOb, sPb = 46, 47, 48, 49, 50, 51
sT = 52
sC = 53
sB, sH, sHalf = 54, 55, 56
sT2 = 57
sMask = 58

vLane = 1
vQ32 = 2
vHf = 3
vT0, vT1, vT2, vT3 = 4, 5, 6, 7
vXK = [8, 9, 10, 11]
vKA = [12, 13, 14, 15]
vTR = [16, 17]
vWOr = 18
vDX = [19, 20]
vDWQ = 21
vDK = [22, 23]
vDV = 24
vDWO = [25, 26, 27, 28, 29, 30, 31]
vA0, vA1, vA2, vA3, vA4, vA5, vA6, vA7 = 32, 33, 34, 35, 36, 37, 38, 39
vS = 40
FB = 64
ACC = 128

def vr(b, n): return "v[%d:%d]" % (b, b + n - 1)
def ar(b, n): return "a[%d:%d]" % (b, b + n - 1)

class Stream:
    def __init__(self):
        self.chunks = []
        self.vm_issued = 0
        self.last_instr = {}
        self.pending = []
        self.next_chunk = 0
        self.pos = 0
    def add(self, kind, idx, size):
        if self.pos + size > RING:
            self.pos = 0
        self.chunks.append(dict(kind=kind, idx=idx, size=size, off=self.pos))
        self.pos += size
    def dep(self, c):
        a = self.chunks[c]
        for p in range(c - 1, -1, -1):
            b = self.chunks[p]
            if a['off'] < b['off'] + b['size'] and b['off'] < a['off'] + a['size']:
                return p
        return -1
    def release(self, consumed):
        while self.next_chunk < len(self.chunks) and self.dep(self.next_chunk) <= consumed:
            c = self.next_chunk
            n = self.chunks[c]['size'] // 1024
            for i in range(n):
                self.pending.append((c, i))
            self.next_chunk += 1
    def emit_one(self):
        if not self.pending:
            return False
        c, n = self.pending.pop(0)
        ch = self.chunks[c]
        emit_dma(ch['kind'], ch['idx'], n, ch['off'] + n * 1024)
        self.vm_issued += 1
        self.last_instr[c] = self.vm_issued
        return True
    def emit_all(self):
        while self.emit_one():
            pass
    def wait(self, c):
        while any(p[0] <= c for p in self.pending):
            self.emit_one()
        n = self.vm_issued - self.last_instr[c]
        e("s_waitcnt vmcnt(%d)" % n)

def emit_dma(kind, idx, n, ringoff):
    e("s_add_u32 m0, s%d, %d" % (sRing, ringoff))
    if kind == 'wq':
        e("s_add_u32 s%d, s%d, %d" % (sT, sWQb, (32 * idx + 8 * n) * 8192))
        e("buffer_load_dwordx4 v%d, s[%d:%d], s%d offen lds" % (vDWQ, sWQ, sWQ + 3, sT))
    elif kind == 'k':
        kt, db = idx
        e("s_add_u32 s%d, s%d, %d" % (sT, sKb, (32 * kt + 8 * n) * 512 + db * 128))
        e("buffer_load_dwordx4 v%d, s[%d:%d], s%d offen lds" % (vDK[n & 1], sK, sK + 3, sT))
    elif kind == 'v':
        e("s_add_u32 s%d, s%d, %d" % (sT, sVb, (32 * idx + 8 * n) * 512))
        e("buffer_load_dwordx4 v%d, s[%d:%d], s%d offen lds" % (vDV, sV, sV + 3, sT))
    elif kind == 'wo':
        e("s_add_u32 s%d, s%d, %d" % (sT, sWOb, (32 * idx) * 896))
        e("buffer_load_dwordx4 v%d, s[%d:%d], s%d offen lds" % (vDWO[n], sWO, sWO + 3, sT))
    else:
        raise ValueError(kind)

def srd(s, lo, nbytes):
    e("s_mov_b32 s%d, s%d" % (s, lo))
    e("s_and_b32 s%d, s%d, 0xffff" % (s + 1, lo + 1))
    e("s_mov_b32 s%d, %d" % (s + 2, nbytes))
    e("s_mov_b32 s%d, 0x00020000" % (s + 3))

def barrier():
    e("s_waitcnt lgkmcnt(0)")
    e("s_barrier")

def gen_main():
    lab(NAME + "_kernel")
    e("s_cmp_ge_u32 s2, 256")
    e("s_cbranch_scc1 L_main_end")
    e("s_load_dwordx8 s[4:11], s[0:1], 0")
    e("s_load_dwordx8 s[12:19], s[0:1], 32")
    e("v_lshrrev_b32 v%d, 6, v0" % vT0)
    e("v_and_b32 v%d, 63, v0" % vLane)
    e("s_and_b32 s%d, s2, 7" % sB)
    e("v_readfirstlane_b32 s%d, v%d" % (sW, vT0))
    e("s_lshr_b32 s%d, s2, 4" % sH)
    e("s_lshr_b32 s%d, s2, 3" % sHalf)
    e("s_and_b32 s%d, s%d, 1" % (sHalf, sHalf))
    e("s_mov_b32 s%d, 0x%08x" % (sC, f32bits(1.4426950408889634 / 16.0)))
    e("v_and_b32 v%d, 31, v%d" % (vQ32, vLane))
    e("v_lshrrev_b32 v%d, 5, v%d" % (vHf, vLane))
    e("s_mul_i32 s%d, s%d, %d" % (sRing, sW, RING))
    e("s_waitcnt lgkmcnt(0)")
    srd(sX, 4, 8 * 128 * 448 * 2)
    srd(sK, 6, 8 * 16 * 512 * 256 * 2)
    srd(sV, 8, 8 * 16 * 512 * 256 * 2)
    srd(sWQ, 10, 448 * 4096 * 2)
    srd(sWO, 12, 4096 * 448 * 2)
    srd(sWS, 18, 256 * 4 * 28 * 1024)
    e("s_lshl_b32 s%d, s%d, 1" % (sT, sB))
    e("s_add_u32 s%d, s%d, s%d" % (sT, sT, sHalf))
    e("s_mul_i32 s%d, s%d, %d" % (sXb, sT, 64 * 896))
    e("s_lshl_b32 s%d, s%d, 9" % (sWQb, sH))
    e("s_lshl_b32 s%d, s%d, 7" % (sT, sW))
    e("s_add_u32 s%d, s%d, s%d" % (sWQb, sWQb, sT))
    e("s_lshl_b32 s%d, s%d, 4" % (sT, sB))
    e("s_add_u32 s%d, s%d, s%d" % (sT, sT, sH))
    e("s_lshl_b32 s%d, s%d, 18" % (sT, sT))
    e("s_lshl_b32 s%d, s%d, 16" % (sT2, sW))
    e("s_add_u32 s%d, s%d, s%d" % (sKb, sT, sT2))
    e("s_lshl_b32 s%d, s%d, 7" % (sT2, sW))
    e("s_add_u32 s%d, s%d, s%d" % (sVb, sT, sT2))
    e("s_mul_i32 s%d, s%d, %d" % (sWOb, sH, 256 * 896))
    e("s_mul_i32 s%d, s%d, 224" % (sT, sW))
    e("s_add_u32 s%d, s%d, s%d" % (sWOb, sWOb, sT))
    e("s_lshl_b32 s%d, s2, 2" % sT)
    e("s_add_u32 s%d, s%d, s%d" % (sT, sT, sW))
    e("s_mul_i32 s%d, s%d, %d" % (sPb, sT, 28 * 1024))

    cm("DMA voffsets")
    r8, p8 = vT0, vT1
    e("v_lshrrev_b32 v%d, 3, v%d" % (r8, vLane))
    e("v_and_b32 v%d, 7, v%d" % (p8, vLane))
    e("v_lshrrev_b32 v%d, 1, v%d" % (vT2, r8))
    e("v_xor_b32 v%d, v%d, v%d" % (vT3, p8, vT2))
    e("v_lshlrev_b32 v%d, 4, v%d" % (vA0, vT3))
    e("v_xor_b32 v%d, 64, v%d" % (vA1, vA0))
    e("v_mul_u32_u24 v%d, 896, v%d" % (vA2, r8))
    e("v_add_u32 v%d, v%d, v%d" % (vDX[0], vA2, vA0))
    e("v_add_u32 v%d, v%d, v%d" % (vDX[1], vA2, vA1))
    e("v_lshlrev_b32 v%d, 9, v%d" % (vA2, r8))
    e("v_add_u32 v%d, v%d, v%d" % (vDK[0], vA2, vA0))
    e("v_add_u32 v%d, v%d, v%d" % (vDK[1], vA2, vA1))
    e("v_and_b32 v%d, 1, v%d" % (vT3, vT2))
    e("v_lshlrev_b32 v%d, 2, v%d" % (vT3, vT3))
    e("v_xor_b32 v%d, v%d, v%d" % (vT3, p8, vT3))
    e("v_lshlrev_b32 v%d, 4, v%d" % (vT3, vT3))
    e("v_add_u32 v%d, v%d, v%d" % (vDV, vA2, vT3))
    e("v_lshlrev_b32 v%d, 13, v%d" % (vA2, r8))
    e("v_add_u32 v%d, v%d, v%d" % (vDWQ, vA2, vT3))
    for n in range(7):
        e("v_add_u32 v%d, %d, v%d" % (vT0, 64 * n, vLane))
        e("v_mul_u32_u24 v%d, 4682, v%d" % (vT1, vT0))
        e("v_lshrrev_b32 v%d, 16, v%d" % (vT1, vT1))
        e("v_mul_u32_u24 v%d, 14, v%d" % (vT2, vT1))
        e("v_sub_u32 v%d, v%d, v%d" % (vT2, vT0, vT2))
        e("v_mul_u32_u24 v%d, 896, v%d" % (vT1, vT1))
        e("v_lshlrev_b32 v%d, 4, v%d" % (vT2, vT2))
        e("v_add_u32 v%d, v%d, v%d" % (vDWO[n], vT1, vT2))
    e("s_nop 4")

    st = Stream()
    for j in range(14): st.add('wq', j, 4096)
    for kt in range(4):
        for db in range(4): st.add('k', (kt, db), 4096)
    for j in range(16): st.add('v', j, 4096)
    for t in range(8): st.add('wo', t, 7168)
    C_WQ, C_K, C_V, C_WO = 0, 14, 30, 46

    cm("x tile DMA")
    e("s_mul_i32 s%d, s%d, 14" % (sT2, sW))
    for k in range(14):
        e("s_add_u32 s60, s%d, %d" % (sT2, k))
        e("s_lshr_b32 s61, s60, 3")
        e("s_and_b32 s62, s60, 7")
        e("s_lshl_b32 s63, s60, 10")
        e("s_add_u32 m0, s63, %d" % SH)
        e("s_mul_i32 s63, s62, %d" % (8 * 896))
        e("s_lshl_b32 s61, s61, 7")
        e("s_add_u32 s63, s63, s61")
        e("s_add_u32 s63, s63, s%d" % sXb)
        e("buffer_load_dwordx4 v%d, s[%d:%d], s63 offen lds" % (vDX[k & 1], sX, sX + 3))
        st.vm_issued += 1
    x_last = st.vm_issued
    st.release(-1)
    st.emit_all()

    cm("LDS read address regs")
    e("v_lshrrev_b32 v%d, 1, v%d" % (vT0, vQ32))
    e("v_and_b32 v%d, 7, v%d" % (vT0, vT0))
    e("v_lshlrev_b32 v%d, 7, v%d" % (vT1, vQ32))
    for k in range(4):
        e("v_add_u32 v%d, %d, v%d" % (vT2, 2 * k, vHf))
        e("v_xor_b32 v%d, v%d, v%d" % (vT2, vT2, vT0))
        e("v_lshl_add_u32 v%d, v%d, 4, v%d" % (vT2, vT2, vT1))
        e("v_add_u32 v%d, %d, v%d" % (vXK[k], SH, vT2))
        e("v_add_u32 v%d, s%d, v%d" % (vKA[k], sRing, vT2))
    e("v_lshrrev_b32 v%d, 4, v%d" % (vT0, vLane))
    e("v_and_b32 v%d, 1, v%d" % (vT0, vT0))
    e("v_and_b32 v%d, 15, v%d" % (vT1, vLane))
    e("v_lshrrev_b32 v%d, 2, v%d" % (vT2, vT1))
    e("v_and_b32 v%d, 3, v%d" % (vT3, vT1))
    e("v_lshl_add_u32 v%d, v%d, 3, v%d" % (vA0, vHf, vT2))
    e("v_lshlrev_b32 v%d, 7, v%d" % (vA0, vA0))
    e("v_lshrrev_b32 v%d, 1, v%d" % (vA1, vT3))
    e("v_lshl_add_u32 v%d, v%d, 1, v%d" % (vA1, vT0, vA1))
    e("v_lshrrev_b32 v%d, 1, v%d" % (vA2, vT2))
    e("v_lshlrev_b32 v%d, 2, v%d" % (vA2, vA2))
    e("v_xor_b32 v%d, v%d, v%d" % (vA1, vA1, vA2))
    e("v_lshl_add_u32 v%d, v%d, 4, v%d" % (vA0, vA1, vA0))
    e("v_and_b32 v%d, 1, v%d" % (vA1, vT3))
    e("v_lshl_add_u32 v%d, v%d, 3, v%d" % (vA0, vA1, vA0))
    e("v_add_u32 v%d, s%d, v%d" % (vTR[0], sRing, vA0))
    e("v_xor_b32 v%d, 64, v%d" % (vTR[1], vTR[0]))
    e("v_lshrrev_b32 v%d, 4, v%d" % (vA0, vLane))
    e("v_lshl_add_u32 v%d, v%d, 2, v%d" % (vA0, vA0, vT2))
    e("v_mul_u32_u24 v%d, 224, v%d" % (vA0, vA0))
    e("v_lshl_add_u32 v%d, v%d, 3, v%d" % (vA0, vT3, vA0))
    e("v_add_u32 v%d, s%d, v%d" % (vWOr, sRing, vA0))

    e("s_waitcnt vmcnt(%d)" % (st.vm_issued - x_last))
    e("s_barrier")

    cm("==== phase 1: Q^T = wq^T x^T ====")
    def p1_reads(j, buf):
        base = FB + buf * 32
        off = st.chunks[C_WQ + j]['off']
        for ks in range(2):
            for D in range(2):
                for a in range(2):
                    r = base + (ks * 2 + D) * 4 + a * 2
                    e("ds_read_b64_tr_b16 %s, v%d offset:%d" % (vr(r, 2), vTR[D], off + (16 * ks + 4 * a) * 128))
            s = 2 * j + ks
            for t in range(2):
                r = base + 16 + (ks * 2 + t) * 4
                e("ds_read_b128 %s, v%d offset:%d" % (vr(r, 4), vXK[s & 3], (s >> 2) * 8192 + t * 4096))
    def p1_mfma(j, buf, half):
        base = FB + buf * 32
        ks = half
        for D in range(2):
            for t in range(2):
                acc = ACC + (D * 2 + t) * 16
                c = "0" if (j == 0 and ks == 0) else vr(acc, 16)
                e("v_mfma_f32_32x32x16_bf16 %s, %s, %s, %s" % (vr(acc, 16), vr(base + (ks * 2 + D) * 4, 4), vr(base + 16 + (ks * 2 + t) * 4, 4), c))
                if (D * 2 + t) % 2 == 1:
                    st.emit_one()
    st.wait(C_WQ + 0)
    p1_reads(0, 0)
    for j in range(14):
        e("s_waitcnt lgkmcnt(0)")
        st.release(C_WQ + j)
        p1_mfma(j, j & 1, 0)
        if j + 1 < 14:
            st.wait(C_WQ + j + 1)
            p1_reads(j + 1, (j + 1) & 1)
        p1_mfma(j, j & 1, 1)
    st.emit_all()
    e("s_barrier")
    e("s_nop 15")
    e("s_lshr_b32 s%d, s%d, 1" % (sT, sW))
    e("s_lshl_b32 s%d, s%d, 8" % (sT, sT))
    e("s_add_u32 s%d, s%d, %d" % (sT, sT, SH))
    e("s_and_b32 s%d, s%d, 1" % (sT2, sW))
    e("s_lshl_b32 s%d, s%d, 3" % (sT2, sT2))
    e("v_and_b32 v%d, 15, v%d" % (vT0, vQ32))
    e("v_xor_b32 v%d, s%d, v%d" % (vT0, sT2, vT0))
    e("v_lshlrev_b32 v%d, 4, v%d" % (vT0, vT0))
    e("v_lshl_add_u32 v%d, v%d, 9, v%d" % (vT0, vQ32, vT0))
    e("v_lshl_add_u32 v%d, v%d, 3, v%d" % (vT0, vHf, vT0))
    e("v_add_u32 v%d, s%d, v%d" % (vA0, sT, vT0))
    for D in range(2):
        for t in range(2):
            acc = ACC + (D * 2 + t) * 16
            for g in range(4):
                e("v_cvt_pk_bf16_f32 v%d, v%d, v%d" % (vS + 0, acc + 4 * g, acc + 4 * g + 1))
                e("v_cvt_pk_bf16_f32 v%d, v%d, v%d" % (vS + 1, acc + 4 * g + 2, acc + 4 * g + 3))
                e("v_xor_b32 v%d, %d, v%d" % (vA1, (4 * D + g) << 4, vA0))
                e("ds_write_b64 v%d, %s offset:%d" % (vA1, vr(vS, 2), t * 16384))
    barrier()
    e("v_and_b32 v%d, 15, v%d" % (vT0, vQ32))
    e("v_xor_b32 v%d, v%d, v%d" % (vT0, vHf, vT0))
    e("v_lshlrev_b32 v%d, 4, v%d" % (vT0, vT0))
    e("v_lshl_add_u32 v%d, v%d, 9, v%d" % (vT0, vQ32, vT0))
    e("v_add_u32 v%d, %d, v%d" % (vA0, SH, vT0))
    for s7 in range(8):
        e("v_xor_b32 v%d, %d, v%d" % (vA1, (2 * s7) << 4, vA0))
        for sh in range(2):
            s = sh * 8 + s7
            for t in range(2):
                e("ds_read_b128 %s, v%d offset:%d" % (ar((s * 2 + t) * 4, 4), vA1, sh * 256 + t * 16384))
        if s7 % 3 == 2:
            e("s_waitcnt lgkmcnt(0)")

    cm("==== phase 2 ====")
    def p2_reads(c, buf):
        base = FB + buf * 32
        off = st.chunks[C_K + c]['off']
        for k in range(4):
            e("ds_read_b128 %s, v%d offset:%d" % (vr(base + 4 * k, 4), vKA[k], off))
    def p2_mfma(c, buf, half):
        base = FB + buf * 32
        kt, db = divmod(c, 4)
        for k in range(2 * half, 2 * half + 2):
            s = 4 * db + k
            for t in range(2):
                acc = ACC + (kt * 2 + t) * 16
                cc = "0" if s == 0 else vr(acc, 16)
                e("v_mfma_f32_32x32x16_bf16 %s, %s, %s, %s" % (vr(acc, 16), vr(base + 4 * k, 4), ar((s * 2 + t) * 4, 4), cc))
            st.emit_one()
    st.wait(C_K + 0)
    p2_reads(0, 0)
    for c in range(16):
        e("s_waitcnt lgkmcnt(0)")
        st.release(C_K + c)
        p2_mfma(c, c & 1, 0)
        if c + 1 < 16:
            st.wait(C_K + c + 1)
            p2_reads(c + 1, (c + 1) & 1)
        p2_mfma(c, c & 1, 1)
    st.emit_all()
    e("s_nop 15")

    cm("==== phase 3: softmax ====")
    e("s_mov_b32 s%d, 0xffff0000" % sMask)
    vM = [vS + 0, vS + 1]
    def accreg(kt, t, i): return ACC + (kt * 2 + t) * 16 + i
    for t in range(2):
        for kt in range(4):
            for i in range(0, 16, 2):
                a0, a1 = accreg(kt, t, i), accreg(kt, t, i + 1)
                e("v_cvt_pk_bf16_f32 v%d, v%d, v%d" % (a1, a0, a1))
                e("v_lshlrev_b32 v%d, 16, v%d" % (a0, a1))
                e("v_and_b32 v%d, s%d, v%d" % (a1, sMask, a1))
    mreg = [vS + 0, vS + 2]
    lreg = [vS + 1, vS + 3]
    tmpm = [vS + 4, vS + 5]
    for t in range(2):
        vals = [accreg(kt, t, i) for kt in range(4) for i in range(16)]
        e("v_max_f32 v%d, v%d, v%d" % (mreg[t], vals[0], vals[1]))
        e("v_max_f32 v%d, v%d, v%d" % (tmpm[t], vals[2], vals[3]))
    for idx in range(4, 64, 4):
        for t in range(2):
            vals = [accreg(kt, t, i) for kt in range(4) for i in range(16)]
            e("v_max3_f32 v%d, v%d, v%d, v%d" % (mreg[t], mreg[t], vals[idx], vals[idx + 1]))
            e("v_max3_f32 v%d, v%d, v%d, v%d" % (tmpm[t], tmpm[t], vals[idx + 2], vals[idx + 3]))
    for t in range(2):
        e("v_max_f32 v%d, v%d, v%d" % (mreg[t], mreg[t], tmpm[t]))
    nmc = [vS + 6, vS + 7]
    for t in range(2):
        e("v_mul_f32 v%d, s%d, v%d" % (nmc[t], sC, mreg[t]))
    for kt in range(4):
        for i in range(16):
            for t in range(2):
                a = accreg(kt, t, i)
                e("v_fma_f32 v%d, v%d, s%d, -v%d" % (a, a, sC, nmc[t]))
            for t in range(2):
                a = accreg(kt, t, i)
                e("v_exp_f32 v%d, v%d" % (a, a))
    e("s_nop 0")
    sp = [[vS + 8, vS + 9], [vS + 10, vS + 11]]
    for t in range(2):
        vals = [accreg(kt, t, i) for kt in range(4) for i in range(16)]
        e("v_add_f32 v%d, v%d, v%d" % (sp[t][0], vals[0], vals[1]))
        e("v_add_f32 v%d, v%d, v%d" % (sp[t][1], vals[2], vals[3]))
    for idx in range(4, 64, 2):
        for t in range(2):
            vals = [accreg(kt, t, i) for kt in range(4) for i in range(16)]
            e("v_add_f32 v%d, v%d, v%d" % (sp[t][0], sp[t][0], vals[idx]))
            e("v_add_f32 v%d, v%d, v%d" % (sp[t][1], sp[t][1], vals[idx + 1]))
    for t in range(2):
        e("v_add_f32 v%d, v%d, v%d" % (lreg[t], sp[t][0], sp[t][1]))
    e("s_lshl_b32 s%d, s%d, 10" % (sT, sW))
    e("s_add_u32 s%d, s%d, %d" % (sT, sT, SH))
    e("v_lshlrev_b32 v%d, 3, v%d" % (vT0, vQ32))
    e("v_lshl_add_u32 v%d, v%d, 9, v%d" % (vT1, vHf, vT0))
    e("v_add_u32 v%d, s%d, v%d" % (vA0, sT, vT1))
    e("v_add_u32 v%d, %d, v%d" % (vA1, SH, vT0))
    for t in range(2):
        e("ds_write_b64 v%d, %s offset:%d" % (vA0, vr(mreg[t], 2), t * 256))
    barrier()
    ML = FB
    for t in range(2):
        for k in range(8):
            e("ds_read_b64 %s, v%d offset:%d" % (vr(ML + (t * 8 + k) * 2, 2), vA1, k * 512 + t * 256))
        e("s_waitcnt lgkmcnt(0)")
    barrier()
    fac = [vS + 12, vS + 13]
    for t in range(2):
        mm = vS + 14 + t
        ms = [ML + (t * 8 + k) * 2 for k in range(8)]
        e("v_max3_f32 v%d, v%d, v%d, v%d" % (mm, ms[0], ms[1], ms[2]))
        e("v_max3_f32 v%d, v%d, v%d, v%d" % (mm, mm, ms[3], ms[4]))
        e("v_max3_f32 v%d, v%d, v%d, v%d" % (mm, mm, ms[5], ms[6]))
        e("v_max_f32 v%d, v%d, v%d" % (mm, mm, ms[7]))
        for k in range(8):
            e("v_sub_f32 v%d, v%d, v%d" % (ms[k], ms[k], mm))
            e("v_mul_f32 v%d, s%d, v%d" % (ms[k], sC, ms[k]))
            e("v_exp_f32 v%d, v%d" % (ms[k], ms[k]))
        e("s_nop 0")
        lg = vS + 16 + t
        e("v_mul_f32 v%d, v%d, v%d" % (lg, ms[0], ms[0] + 1))
        for k in range(1, 8):
            e("v_fmac_f32 v%d, v%d, v%d" % (lg, ms[k], ms[k] + 1))
        e("v_rcp_f32 v%d, v%d" % (lg, lg))
        e("v_sub_f32 v%d, v%d, v%d" % (fac[t], mreg[t], mm))
        e("v_mul_f32 v%d, s%d, v%d" % (fac[t], sC, fac[t]))
        e("v_exp_f32 v%d, v%d" % (fac[t], fac[t]))
        e("s_nop 0")
        e("v_mul_f32 v%d, v%d, v%d" % (fac[t], fac[t], lg))
    e("s_lshl_b32 s%d, s%d, 8" % (sT, sW))
    e("s_add_u32 s%d, s%d, %d" % (sT, sT, SH))
    e("v_and_b32 v%d, 15, v%d" % (vT0, vQ32))
    e("v_lshlrev_b32 v%d, 4, v%d" % (vT0, vT0))
    e("v_lshl_add_u32 v%d, v%d, 10, v%d" % (vT0, vQ32, vT0))
    e("v_lshl_add_u32 v%d, v%d, 3, v%d" % (vT1, vHf, vT0))
    e("v_add_u32 v%d, s%d, v%d" % (vA0, sT, vT1))
    for kt in range(4):
        for g in range(4):
            e("v_xor_b32 v%d, %d, v%d" % (vA1, (4 * kt + g) << 4, vA0))
            for t in range(2):
                a = accreg(kt, t, 4 * g)
                for i in range(4):
                    e("v_mul_f32 v%d, v%d, v%d" % (a + i, a + i, fac[t]))
                pk = vS + 18 + 2 * t
                e("v_cvt_pk_bf16_f32 v%d, v%d, v%d" % (pk, a, a + 1))
                e("v_cvt_pk_bf16_f32 v%d, v%d, v%d" % (pk + 1, a + 2, a + 3))
                e("ds_write_b64 v%d, %s offset:%d" % (vA1, vr(pk, 2), t * 32768))
    vPR = [vS + 0, vS + 1, vS + 2, vS + 3, vS + 4, vS + 5, vS + 6, vS + 7]
    e("v_and_b32 v%d, 15, v%d" % (vT0, vQ32))
    e("v_xor_b32 v%d, v%d, v%d" % (vT0, vHf, vT0))
    e("v_lshlrev_b32 v%d, 4, v%d" % (vT0, vT0))
    e("v_lshl_add_u32 v%d, v%d, 10, v%d" % (vT0, vQ32, vT0))
    e("v_add_u32 v%d, %d, v%d" % (vA2, SH, vT0))
    e("s_waitcnt lgkmcnt(0)")
    for k in range(8):
        e("v_xor_b32 v%d, %d, v%d" % (vPR[k], (2 * k) << 4, vA2))
    e("s_barrier")

    cm("==== phase 4 ====")
    def p4_reads(j, buf):
        base = FB + buf * 32
        off = st.chunks[C_V + j]['off']
        for ks in range(2):
            for D in range(2):
                for a in range(2):
                    r = base + (ks * 2 + D) * 4 + a * 2
                    e("ds_read_b64_tr_b16 %s, v%d offset:%d" % (vr(r, 2), vTR[D], off + (16 * ks + 4 * a) * 128))
            s = 2 * j + ks
            for t in range(2):
                r = base + 16 + (ks * 2 + t) * 4
                e("ds_read_b128 %s, v%d offset:%d" % (vr(r, 4), vPR[s & 7], (s >> 3) * 256 + t * 32768))
    def p4_mfma(j, buf, half):
        base = FB + buf * 32
        ks = half
        for D in range(2):
            for t in range(2):
                acc = ACC + (D * 2 + t) * 16
                c = "0" if (j == 0 and ks == 0) else vr(acc, 16)
                e("v_mfma_f32_32x32x16_bf16 %s, %s, %s, %s" % (vr(acc, 16), vr(base + (ks * 2 + D) * 4, 4), vr(base + 16 + (ks * 2 + t) * 4, 4), c))
                if (D * 2 + t) % 2 == 1:
                    st.emit_one()
    st.wait(C_V + 0)
    p4_reads(0, 0)
    for j in range(16):
        e("s_waitcnt lgkmcnt(0)")
        st.release(C_V + j)
        p4_mfma(j, j & 1, 0)
        if j + 1 < 16:
            st.wait(C_V + j + 1)
            p4_reads(j + 1, (j + 1) & 1)
        p4_mfma(j, j & 1, 1)
    st.emit_all()
    e("s_barrier")
    e("s_nop 15")
    e("s_lshr_b32 s%d, s%d, 1" % (sT, sW))
    e("s_lshl_b32 s%d, s%d, 8" % (sT, sT))
    e("s_add_u32 s%d, s%d, %d" % (sT, sT, SH))
    e("s_and_b32 s%d, s%d, 1" % (sT2, sW))
    e("s_lshl_b32 s%d, s%d, 3" % (sT2, sT2))
    e("v_and_b32 v%d, 15, v%d" % (vT0, vQ32))
    e("v_xor_b32 v%d, v%d, v%d" % (vT0, vHf, vT0))
    e("v_xor_b32 v%d, s%d, v%d" % (vT0, sT2, vT0))
    e("v_lshlrev_b32 v%d, 4, v%d" % (vT0, vT0))
    e("v_lshl_add_u32 v%d, v%d, 9, v%d" % (vT0, vQ32, vT0))
    e("v_add_u32 v%d, s%d, v%d" % (vA0, sT, vT0))
    for D in range(2):
        for t in range(2):
            acc = ACC + (D * 2 + t) * 16
            for g in range(4):
                e("v_cvt_pk_bf16_f32 v%d, v%d, v%d" % (vS + 8, acc + 4 * g, acc + 4 * g + 1))
                e("v_cvt_pk_bf16_f32 v%d, v%d, v%d" % (vS + 9, acc + 4 * g + 2, acc + 4 * g + 3))
                e("v_xor_b32 v%d, %d, v%d" % (vA1, (4 * D + 2 * (g & 1)) << 4, vA0))
                e("ds_write_b64 v%d, %s offset:%d" % (vA1, vr(vS + 8, 2), t * 16384 + (g >> 1) * 8))
    barrier()
    e("v_and_b32 v%d, 15, v%d" % (vT0, vLane))
    e("v_lshrrev_b32 v%d, 4, v%d" % (vT1, vLane))
    e("v_xor_b32 v%d, v%d, v%d" % (vT1, vT1, vT0))
    e("v_lshlrev_b32 v%d, 4, v%d" % (vT1, vT1))
    e("v_lshl_add_u32 v%d, v%d, 9, v%d" % (vT1, vT0, vT1))
    e("v_add_u32 v%d, %d, v%d" % (vA0, SH, vT1))
    for T3 in range(4):
        e("v_xor_b32 v%d, %d, v%d" % (vA1, (4 * T3) << 4, vA0))
        for Th in range(2):
            T = Th * 4 + T3
            for qt in range(4):
                e("ds_read_b128 %s, v%d offset:%d" % (ar((T * 4 + qt) * 4, 4), vA1, qt * 8192 + Th * 256))
        e("s_waitcnt lgkmcnt(0)")

    cm("==== phase 5 ====")
    def p5_reads(T, buf):
        base = FB + buf * 32
        off = st.chunks[C_WO + T]['off']
        for ct in range(7):
            for a in range(2):
                e("ds_read_b64_tr_b16 %s, v%d offset:%d" % (vr(base + ct * 4 + a * 2, 2), vWOr, off + a * 16 * 224 + ct * 32))
    def p5_mfma(T, buf, cts):
        base = FB + buf * 32
        for ct in cts:
            for qt in range(4):
                acc = ACC + (ct * 4 + qt) * 4
                c = "0" if T == 0 else vr(acc, 4)
                e("v_mfma_f32_16x16x32_bf16 %s, %s, %s, %s" % (vr(acc, 4), vr(base + ct * 4, 4), ar((T * 4 + qt) * 4, 4), c))
            st.emit_one()
    st.wait(C_WO + 0)
    p5_reads(0, 0)
    for T in range(8):
        e("s_waitcnt lgkmcnt(0)")
        st.release(C_WO + T)
        p5_mfma(T, T & 1, [0, 1, 2, 3])
        if T + 1 < 8:
            st.wait(C_WO + T + 1)
            p5_reads(T + 1, (T + 1) & 1)
        p5_mfma(T, T & 1, [4, 5, 6])
    st.emit_all()
    e("s_nop 15")
    e("v_lshlrev_b32 v%d, 4, v%d" % (vA0, vLane))
    for ti in range(28):
        acc = ACC + ti * 4
        if ti % 4 == 0:
            e("s_add_u32 s%d, s%d, %d" % (sT, sPb, ti * 1024))
        e("buffer_store_dwordx4 %s, v%d, s[%d:%d], s%d offen offset:%d" % (vr(acc, 4), vA0, sWS, sWS + 3, sT, (ti % 4) * 1024))
    e("s_waitcnt vmcnt(0)")
    lab("L_main_end")
    e("s_endpgm")

def gen_reduce():
    L.append(".p2align 8")
    L.append(".globl reduce_kernel")
    L.append(".type reduce_kernel,@function")
    lab("reduce_kernel")
    e("s_cmp_ge_u32 s2, 448")
    e("s_cbranch_scc1 L_red_end")
    e("s_load_dwordx2 s[4:5], s[0:1], 40")
    e("s_load_dwordx2 s[6:7], s[0:1], 56")
    e("v_lshrrev_b32 v1, 6, v0")
    e("v_and_b32 v2, 63, v0")
    e("s_and_b32 s20, s2, 7")
    e("v_readfirstlane_b32 s21, v1")
    e("s_lshr_b32 s22, s2, 3")
    e("s_cmp_ge_u32 s22, 28")
    e("s_cselect_b32 s23, 1, 0")
    e("s_mul_i32 s24, s23, 28")
    e("s_sub_u32 s24, s22, s24")
    e("s_waitcnt lgkmcnt(0)")
    srd(8, 4, 8 * 128 * 448 * 2)
    srd(12, 6, 256 * 4 * 28 * 1024)
    e("s_lshl_b32 s25, s23, 3")
    e("s_add_u32 s25, s25, s20")
    e("s_lshl_b32 s25, s25, 2")
    e("s_add_u32 s25, s25, s21")
    e("s_mul_i32 s25, s25, 28")
    e("s_add_u32 s25, s25, s24")
    e("s_lshl_b32 s25, s25, 10")
    e("v_lshlrev_b32 v3, 4, v2")
    e("s_nop 4")
    for h in range(16):
        e("s_add_u32 s26, s25, %d" % (h * 16 * 4 * 28 * 1024))
        e("buffer_load_dwordx4 v[%d:%d], v3, s[12:15], s26 offen" % (8 + 4 * h, 11 + 4 * h))
    e("s_and_b32 s27, s24, 3")
    e("s_lshr_b32 s28, s24, 2")
    e("s_lshl_b32 s29, s20, 7")
    e("s_lshl_b32 s30, s23, 6")
    e("s_add_u32 s29, s29, s30")
    e("s_lshl_b32 s30, s27, 4")
    e("s_add_u32 s29, s29, s30")
    e("s_mul_i32 s29, s29, 896")
    e("s_mul_i32 s30, s21, 224")
    e("s_add_u32 s29, s29, s30")
    e("s_lshl_b32 s30, s28, 5")
    e("s_add_u32 s29, s29, s30")
    e("v_and_b32 v4, 15, v2")
    e("v_mul_u32_u24 v4, 896, v4")
    e("v_lshrrev_b32 v5, 4, v2")
    e("v_lshl_add_u32 v4, v5, 3, v4")
    for h in range(1, 16):
        e("s_waitcnt vmcnt(%d)" % (15 - h))
        for i in range(4):
            e("v_add_f32 v%d, v%d, v%d" % (8 + i, 8 + i, 8 + 4 * h + i))
    e("v_cvt_pk_bf16_f32 v8, v8, v9")
    e("v_cvt_pk_bf16_f32 v9, v10, v11")
    e("buffer_store_dwordx2 v[8:9], v4, s[8:11], s29 offen")
    e("s_waitcnt vmcnt(0)")
    lab("L_red_end")
    e("s_endpgm")

HEADER = """; Kernarg layout for this problem (64 bytes, ptrs only, base s[0:1]):
;   offset   0: d_in[0] x  shape=(8, 128, 448) dtype=bfloat16
;   offset   8: d_in[1] k_cache  shape=(8, 16, 512, 256) dtype=bfloat16
;   offset  16: d_in[2] v_cache  shape=(8, 16, 512, 256) dtype=bfloat16
;   offset  24: d_in[3] wq  shape=(448, 4096) dtype=bfloat16
;   offset  32: d_in[4] wo  shape=(4096, 448) dtype=bfloat16
;   offset  40: d_out     shape=(8, 128, 448) dtype=bfloat16
;   offset  48: d_debug   256 bytes
;   offset  56: d_ws      268435456 bytes workspace
; generated by gen.py
; @launch kernel=%s_kernel grid=(256,1,1) block=(256,1,1) lds=%d
; @launch kernel=reduce_kernel grid=(448,1,1) block=(256,1,1) lds=0
.amdgcn_target "amdgcn-amd-amdhsa--gfx950"
.text
.globl %s_kernel
.p2align 8
.type %s_kernel,@function
""" % (NAME, LDS_TOTAL, NAME, NAME)

FOOTER = """.section .rodata,"a"
.p2align 6
.amdhsa_kernel %s_kernel
  .amdhsa_next_free_vgpr 384
  .amdhsa_next_free_sgpr 102
  .amdhsa_accum_offset 256
  .amdhsa_group_segment_fixed_size 0
  .amdhsa_kernarg_size 64
  .amdhsa_user_sgpr_count 2
  .amdhsa_user_sgpr_kernarg_segment_ptr 1
  .amdhsa_system_sgpr_workgroup_id_x 1
.end_amdhsa_kernel
.p2align 6
.amdhsa_kernel reduce_kernel
  .amdhsa_next_free_vgpr 80
  .amdhsa_next_free_sgpr 40
  .amdhsa_accum_offset 80
  .amdhsa_group_segment_fixed_size 0
  .amdhsa_kernarg_size 64
  .amdhsa_user_sgpr_count 2
  .amdhsa_user_sgpr_kernarg_segment_ptr 1
  .amdhsa_system_sgpr_workgroup_id_x 1
.end_amdhsa_kernel
""" % NAME

gen_main()
gen_reduce()
with open(OUT, "w") as f:
    f.write(HEADER + "\n".join(L) + "\n" + FOOTER)
print("wrote", OUT, len(L), "lines")
```

```python
import struct, sys, os
KVPOL = os.environ.get("KVPOL", " nt")

OUT = sys.argv[1] if len(sys.argv) > 1 else "standalone__mha_block_cached__near_ridge.s"
NAME = "standalone__mha_block_cached__near_ridge"

L = []
def e(s): L.append("    " + s)
def lab(s): L.append(s + ":")
def cm(s): L.append("    ; " + s)

def f32bits(x): return struct.unpack("<I", struct.pack("<f", x))[0]

RING = 24576
SH = 4 * RING
LDS_TOTAL = 163840

sX, sK, sV, sWQ, sWO, sWS = 20, 24, 28, 32, 36, 40
sW = 44
sRing = 45
sXb, sWQb, sKb, sVb, sWOb, sPb = 46, 47, 48, 49, 50, 51
sT = 52
sC = 53
sB, sH, sHalf = 54, 55, 56
sT2 = 57
sMask = 58
sKc = [96, 97, 98, 99]

vLane = 1
vQ32 = 2
vHf = 3
vT0, vT1, vT2, vT3 = 4, 5, 6, 7
vXK = [8, 9, 10, 11]
vKA = [12, 13, 14, 15]
vTR = [16, 17]
vWOr = 18
vDX = [19, 20]
vDWQ = 21
vDK = [22, 23]
vDV = 24
vDWO = [25, 26, 27, 28, 29, 30, 31]
vA0, vA1, vA2, vA3, vA4, vA5, vA6, vA7 = 32, 33, 34, 35, 36, 37, 38, 39
vS = 40
FB = 64
ACC = 128

def vr(b, n): return "v[%d:%d]" % (b, b + n - 1)
def ar(b, n): return "a[%d:%d]" % (b, b + n - 1)

class Stream:
    def __init__(self):
        self.chunks = []
        self.vm_issued = 0
        self.last_instr = {}
        self.pending = []
        self.next_chunk = 0
        self.pos = 0
    def add(self, kind, idx, size):
        if self.pos + size > RING:
            self.pos = 0
        self.chunks.append(dict(kind=kind, idx=idx, size=size, off=self.pos))
        self.pos += size
    def dep(self, c):
        a = self.chunks[c]
        for p in range(c - 1, -1, -1):
            b = self.chunks[p]
            if a['off'] < b['off'] + b['size'] and b['off'] < a['off'] + a['size']:
                return p
        return -1
    def release(self, consumed):
        while self.next_chunk < len(self.chunks) and self.dep(self.next_chunk) <= consumed:
            c = self.next_chunk
            n = self.chunks[c]['size'] // 1024
            for i in range(n):
                self.pending.append((c, i))
            self.next_chunk += 1
    def emit_one(self):
        if not self.pending:
            return False
        c, n = self.pending.pop(0)
        ch = self.chunks[c]
        emit_dma(ch['kind'], ch['idx'], n, ch['off'] + n * 1024)
        self.vm_issued += 1
        self.last_instr[c] = self.vm_issued
        return True
    def emit_all(self):
        while self.emit_one():
            pass
    def wait(self, c):
        while any(p[0] <= c for p in self.pending):
            self.emit_one()
        n = self.vm_issued - self.last_instr[c]
        e("s_waitcnt vmcnt(%d)" % n)

def emit_dma(kind, idx, n, ringoff):
    e("s_add_u32 m0, s%d, %d" % (sRing, ringoff))
    if kind == 'wq':
        e("s_add_u32 s%d, s%d, %d" % (sT, sWQb, (32 * idx + 8 * n) * 8192))
        e("buffer_load_dwordx4 v%d, s[%d:%d], s%d offen lds" % (vDWQ, sWQ, sWQ + 3, sT))
    elif kind == 'k':
        kt, db = idx
        e("s_add_u32 s%d, s%d, %d" % (sT, sKc[db], (32 * kt + 8 * n) * 512))
        e("buffer_load_dwordx4 v%d, s[%d:%d], s%d offen%s lds" % (vDK[n & 1], sK, sK + 3, sT, KVPOL))
    elif kind == 'v':
        e("s_add_u32 s%d, s%d, %d" % (sT, sVb, (32 * idx + 8 * n) * 512))
        e("buffer_load_dwordx4 v%d, s[%d:%d], s%d offen%s lds" % (vDV, sV, sV + 3, sT, KVPOL))
    elif kind == 'wo':
        e("s_add_u32 s%d, s%d, %d" % (sT, sWOb, (32 * idx) * 896))
        e("buffer_load_dwordx4 v%d, s[%d:%d], s%d offen lds" % (vDWO[n], sWO, sWO + 3, sT))
    else:
        raise ValueError(kind)

def srd(s, lo, nbytes):
    e("s_mov_b32 s%d, s%d" % (s, lo))
    e("s_and_b32 s%d, s%d, 0xffff" % (s + 1, lo + 1))
    e("s_mov_b32 s%d, %d" % (s + 2, nbytes))
    e("s_mov_b32 s%d, 0x00020000" % (s + 3))

import os
STAMPS = bool(os.environ.get("GEN_STAMPS"))
nstamp = [0]
def stamp():
    if not STAMPS: return
    i = nstamp[0]; nstamp[0] += 1
    e("s_memtime s[%d:%d]" % (64 + 2 * i, 65 + 2 * i))
    e("s_waitcnt lgkmcnt(0)")
def stamp_flush():
    if not STAMPS: return
    e("s_mov_b32 s%d, 0x10000000" % (sWS + 2))
    e("s_lshl_b32 s%d, s2, 2" % sT)
    e("s_add_u32 s%d, s%d, s%d" % (sT, sT, sW))
    e("s_lshl_b32 s%d, s%d, 8" % (sT, sT))
    e("s_add_u32 s%d, s%d, %d" % (sT, sT, 128 << 20))
    e("v_mov_b32 v%d, 0" % vA1)
    for i in range(nstamp[0]):
        e("v_mov_b32 v%d, s%d" % (vS, 64 + 2 * i))
        e("v_mov_b32 v%d, s%d" % (vS + 1, 65 + 2 * i))
        e("buffer_store_dwordx2 %s, v%d, s[%d:%d], s%d offen offset:%d" % (vr(vS, 2), vA1, sWS, sWS + 3, sT, 8 * i))
        e("s_nop 2")

def barrier():
    e("s_waitcnt lgkmcnt(0)")
    e("s_barrier")

def gen_main():
    lab(NAME + "_kernel")
    e("s_cmp_ge_u32 s2, 256")
    e("s_cbranch_scc1 L_main_end")
    stamp()
    e("s_load_dwordx8 s[4:11], s[0:1], 0")
    e("s_load_dwordx8 s[12:19], s[0:1], 32")
    e("v_lshrrev_b32 v%d, 6, v0" % vT0)
    e("v_and_b32 v%d, 63, v0" % vLane)
    e("s_and_b32 s%d, s2, 7" % sB)
    e("v_readfirstlane_b32 s%d, v%d" % (sW, vT0))
    e("s_lshr_b32 s%d, s2, 4" % sH)
    e("s_lshr_b32 s%d, s2, 3" % sHalf)
    e("s_and_b32 s%d, s%d, 1" % (sHalf, sHalf))
    e("s_mov_b32 s%d, 0x%08x" % (sC, f32bits(1.4426950408889634 / 16.0)))
    e("v_and_b32 v%d, 31, v%d" % (vQ32, vLane))
    e("v_lshrrev_b32 v%d, 5, v%d" % (vHf, vLane))
    e("s_mul_i32 s%d, s%d, %d" % (sRing, sW, RING))
    e("s_waitcnt lgkmcnt(0)")
    srd(sX, 4, 8 * 128 * 448 * 2)
    srd(sK, 6, 8 * 16 * 512 * 256 * 2)
    srd(sV, 8, 8 * 16 * 512 * 256 * 2)
    srd(sWQ, 10, 448 * 4096 * 2)
    srd(sWO, 12, 4096 * 448 * 2)
    srd(sWS, 18, 256 * 4 * 28 * 1024)
    e("s_lshl_b32 s%d, s%d, 1" % (sT, sB))
    e("s_add_u32 s%d, s%d, s%d" % (sT, sT, sHalf))
    e("s_mul_i32 s%d, s%d, %d" % (sXb, sT, 64 * 896))
    e("s_lshl_b32 s%d, s%d, 9" % (sWQb, sH))
    e("s_lshl_b32 s%d, s%d, 7" % (sT, sW))
    e("s_add_u32 s%d, s%d, s%d" % (sWQb, sWQb, sT))
    e("s_lshl_b32 s%d, s%d, 4" % (sT, sB))
    e("s_add_u32 s%d, s%d, s%d" % (sT, sT, sH))
    e("s_lshl_b32 s%d, s%d, 18" % (sT, sT))
    e("s_lshl_b32 s%d, s%d, 16" % (sT2, sW))
    e("s_add_u32 s%d, s%d, s%d" % (sKb, sT, sT2))
    e("s_lshl_b32 s%d, s%d, 7" % (sT2, sW))
    e("s_add_u32 s%d, s%d, s%d" % (sVb, sT, sT2))
    for db in range(4):
        e("s_add_u32 s%d, s%d, %d" % (sT2, sW, db))
        e("s_and_b32 s%d, s%d, 3" % (sT2, sT2))
        e("s_lshl_b32 s%d, s%d, 7" % (sT2, sT2))
        e("s_add_u32 s%d, s%d, s%d" % (sKc[db], sKb, sT2))
    e("s_mul_i32 s%d, s%d, %d" % (sWOb, sH, 256 * 896))
    e("s_mul_i32 s%d, s%d, 224" % (sT, sW))
    e("s_add_u32 s%d, s%d, s%d" % (sWOb, sWOb, sT))
    e("s_lshl_b32 s%d, s2, 2" % sT)
    e("s_add_u32 s%d, s%d, s%d" % (sT, sT, sW))
    e("s_mul_i32 s%d, s%d, %d" % (sPb, sT, 28 * 1024))

    cm("DMA voffsets")
    r8, p8 = vT0, vT1
    e("v_lshrrev_b32 v%d, 3, v%d" % (r8, vLane))
    e("v_and_b32 v%d, 7, v%d" % (p8, vLane))
    e("v_lshrrev_b32 v%d, 1, v%d" % (vT2, r8))
    e("v_xor_b32 v%d, v%d, v%d" % (vT3, p8, vT2))
    e("v_lshlrev_b32 v%d, 4, v%d" % (vA0, vT3))
    e("v_xor_b32 v%d, 64, v%d" % (vA1, vA0))
    e("v_mul_u32_u24 v%d, 896, v%d" % (vA2, r8))
    e("v_add_u32 v%d, v%d, v%d" % (vDX[0], vA2, vA0))
    e("v_add_u32 v%d, v%d, v%d" % (vDX[1], vA2, vA1))
    e("v_lshlrev_b32 v%d, 9, v%d" % (vA2, r8))
    e("v_add_u32 v%d, v%d, v%d" % (vDK[0], vA2, vA0))
    e("v_add_u32 v%d, v%d, v%d" % (vDK[1], vA2, vA1))
    e("v_and_b32 v%d, 1, v%d" % (vT3, vT2))
    e("v_lshlrev_b32 v%d, 2, v%d" % (vT3, vT3))
    e("v_xor_b32 v%d, v%d, v%d" % (vT3, p8, vT3))
    e("v_lshlrev_b32 v%d, 4, v%d" % (vT3, vT3))
    e("v_add_u32 v%d, v%d, v%d" % (vDV, vA2, vT3))
    e("v_lshlrev_b32 v%d, 13, v%d" % (vA2, r8))
    e("v_add_u32 v%d, v%d, v%d" % (vDWQ, vA2, vT3))
    for n in range(7):
        e("v_add_u32 v%d, %d, v%d" % (vT0, 64 * n, vLane))
        e("v_mul_u32_u24 v%d, 4682, v%d" % (vT1, vT0))
        e("v_lshrrev_b32 v%d, 16, v%d" % (vT1, vT1))
        e("v_mul_u32_u24 v%d, 14, v%d" % (vT2, vT1))
        e("v_sub_u32 v%d, v%d, v%d" % (vT2, vT0, vT2))
        e("v_mul_u32_u24 v%d, 896, v%d" % (vT1, vT1))
        e("v_lshlrev_b32 v%d, 4, v%d" % (vT2, vT2))
        e("v_add_u32 v%d, v%d, v%d" % (vDWO[n], vT1, vT2))
    e("s_nop 4")

    st = Stream()
    for j in range(14): st.add('wq', j, 4096)
    for kt in range(4):
        for db in range(4): st.add('k', (kt, db), 4096)
    for j in range(16): st.add('v', j, 4096)
    for t in range(8): st.add('wo', t, 7168)
    C_WQ, C_K, C_V, C_WO = 0, 14, 30, 46

    cm("x tile DMA")
    e("s_mul_i32 s%d, s%d, 14" % (sT2, sW))
    for k in range(14):
        e("s_add_u32 s60, s%d, %d" % (sT2, k))
        e("s_lshr_b32 s61, s60, 3")
        e("s_and_b32 s62, s60, 7")
        e("s_lshl_b32 s63, s60, 10")
        e("s_add_u32 m0, s63, %d" % SH)
        e("s_mul_i32 s63, s62, %d" % (8 * 896))
        e("s_lshl_b32 s61, s61, 7")
        e("s_add_u32 s63, s63, s61")
        e("s_add_u32 s63, s63, s%d" % sXb)
        e("buffer_load_dwordx4 v%d, s[%d:%d], s63 offen lds" % (vDX[k & 1], sX, sX + 3))
        st.vm_issued += 1
    x_last = st.vm_issued
    st.release(-1)
    st.emit_all()

    cm("LDS read address regs")
    e("v_lshrrev_b32 v%d, 1, v%d" % (vT0, vQ32))
    e("v_and_b32 v%d, 7, v%d" % (vT0, vT0))
    e("v_lshlrev_b32 v%d, 7, v%d" % (vT1, vQ32))
    for k in range(4):
        e("v_add_u32 v%d, %d, v%d" % (vT2, 2 * k, vHf))
        e("v_xor_b32 v%d, v%d, v%d" % (vT2, vT2, vT0))
        e("v_lshl_add_u32 v%d, v%d, 4, v%d" % (vT2, vT2, vT1))
        e("v_add_u32 v%d, %d, v%d" % (vXK[k], SH, vT2))
        e("v_add_u32 v%d, s%d, v%d" % (vKA[k], sRing, vT2))
    e("v_lshrrev_b32 v%d, 4, v%d" % (vT0, vLane))
    e("v_and_b32 v%d, 1, v%d" % (vT0, vT0))
    e("v_and_b32 v%d, 15, v%d" % (vT1, vLane))
    e("v_lshrrev_b32 v%d, 2, v%d" % (vT2, vT1))
    e("v_and_b32 v%d, 3, v%d" % (vT3, vT1))
    e("v_lshl_add_u32 v%d, v%d, 3, v%d" % (vA0, vHf, vT2))
    e("v_lshlrev_b32 v%d, 7, v%d" % (vA0, vA0))
    e("v_lshrrev_b32 v%d, 1, v%d" % (vA1, vT3))
    e("v_lshl_add_u32 v%d, v%d, 1, v%d" % (vA1, vT0, vA1))
    e("v_lshrrev_b32 v%d, 1, v%d" % (vA2, vT2))
    e("v_lshlrev_b32 v%d, 2, v%d" % (vA2, vA2))
    e("v_xor_b32 v%d, v%d, v%d" % (vA1, vA1, vA2))
    e("v_lshl_add_u32 v%d, v%d, 4, v%d" % (vA0, vA1, vA0))
    e("v_and_b32 v%d, 1, v%d" % (vA1, vT3))
    e("v_lshl_add_u32 v%d, v%d, 3, v%d" % (vA0, vA1, vA0))
    e("v_add_u32 v%d, s%d, v%d" % (vTR[0], sRing, vA0))
    e("v_xor_b32 v%d, 64, v%d" % (vTR[1], vTR[0]))
    e("v_lshrrev_b32 v%d, 4, v%d" % (vA0, vLane))
    e("v_lshl_add_u32 v%d, v%d, 2, v%d" % (vA0, vA0, vT2))
    e("v_mul_u32_u24 v%d, 224, v%d" % (vA0, vA0))
    e("v_lshl_add_u32 v%d, v%d, 3, v%d" % (vA0, vT3, vA0))
    e("v_add_u32 v%d, s%d, v%d" % (vWOr, sRing, vA0))

    e("s_waitcnt vmcnt(%d)" % (st.vm_issued - x_last))
    e("s_barrier")

    stamp()
    cm("==== phase 1: Q^T = wq^T x^T ====")
    def p1_reads(j, buf):
        base = FB + buf * 32
        off = st.chunks[C_WQ + j]['off']
        for ks in range(2):
            for D in range(2):
                for a in range(2):
                    r = base + (ks * 2 + D) * 4 + a * 2
                    e("ds_read_b64_tr_b16 %s, v%d offset:%d" % (vr(r, 2), vTR[D], off + (16 * ks + 4 * a) * 128))
            s = 2 * j + ks
            for t in range(2):
                r = base + 16 + (ks * 2 + t) * 4
                e("ds_read_b128 %s, v%d offset:%d" % (vr(r, 4), vXK[s & 3], (s >> 2) * 8192 + t * 4096))
    def p1_mfma(j, buf, half):
        base = FB + buf * 32
        ks = half
        for D in range(2):
            for t in range(2):
                acc = ACC + (D * 2 + t) * 16
                c = "0" if (j == 0 and ks == 0) else vr(acc, 16)
                e("v_mfma_f32_32x32x16_bf16 %s, %s, %s, %s" % (vr(acc, 16), vr(base + (ks * 2 + D) * 4, 4), vr(base + 16 + (ks * 2 + t) * 4, 4), c))
                if (D * 2 + t) % 2 == 1:
                    st.emit_one()
    st.wait(C_WQ + 0)
    p1_reads(0, 0)
    for j in range(14):
        e("s_waitcnt lgkmcnt(0)")
        st.release(C_WQ + j)
        p1_mfma(j, j & 1, 0)
        if j + 1 < 14:
            st.wait(C_WQ + j + 1)
            p1_reads(j + 1, (j + 1) & 1)
        p1_mfma(j, j & 1, 1)
    st.emit_all()
    stamp()
    e("s_barrier")
    e("s_nop 15")
    e("s_lshr_b32 s%d, s%d, 1" % (sT, sW))
    e("s_lshl_b32 s%d, s%d, 8" % (sT, sT))
    e("s_add_u32 s%d, s%d, %d" % (sT, sT, SH))
    e("s_and_b32 s%d, s%d, 1" % (sT2, sW))
    e("s_lshl_b32 s%d, s%d, 3" % (sT2, sT2))
    e("v_and_b32 v%d, 15, v%d" % (vT0, vQ32))
    e("v_xor_b32 v%d, s%d, v%d" % (vT0, sT2, vT0))
    e("v_lshlrev_b32 v%d, 4, v%d" % (vT0, vT0))
    e("v_lshl_add_u32 v%d, v%d, 9, v%d" % (vT0, vQ32, vT0))
    e("v_lshl_add_u32 v%d, v%d, 3, v%d" % (vT0, vHf, vT0))
    e("v_add_u32 v%d, s%d, v%d" % (vA0, sT, vT0))
    for D in range(2):
        for t in range(2):
            acc = ACC + (D * 2 + t) * 16
            for g in range(4):
                e("v_cvt_pk_bf16_f32 v%d, v%d, v%d" % (vS + 0, acc + 4 * g, acc + 4 * g + 1))
                e("v_cvt_pk_bf16_f32 v%d, v%d, v%d" % (vS + 1, acc + 4 * g + 2, acc + 4 * g + 3))
                e("v_xor_b32 v%d, %d, v%d" % (vA1, (4 * D + g) << 4, vA0))
                e("ds_write_b64 v%d, %s offset:%d" % (vA1, vr(vS, 2), t * 16384))
    barrier()
    e("v_and_b32 v%d, 15, v%d" % (vT0, vQ32))
    e("v_xor_b32 v%d, v%d, v%d" % (vT0, vHf, vT0))
    e("v_lshlrev_b32 v%d, 4, v%d" % (vT0, vT0))
    e("v_lshl_add_u32 v%d, v%d, 9, v%d" % (vT0, vQ32, vT0))
    e("v_add_u32 v%d, %d, v%d" % (vA0, SH, vT0))
    for db in range(4):
        e("s_add_u32 s%d, s%d, %d" % (sT2, sW, db))
        e("s_and_b32 s%d, s%d, 3" % (sT2, sT2))
        e("s_lshl_b32 s%d, s%d, 7" % (sT2, sT2))
        e("v_xor_b32 v%d, s%d, v%d" % (vA1, sT2, vA0))
        for k in range(4):
            sidx = 4 * db + k
            e("v_xor_b32 v%d, %d, v%d" % (vA2, k << 5, vA1))
            for t in range(2):
                e("ds_read_b128 %s, v%d offset:%d" % (ar((sidx * 2 + t) * 4, 4), vA2, t * 16384))
        e("s_waitcnt lgkmcnt(0)")

    stamp()
    cm("==== phase 2 ====")
    def p2_reads(c, buf):
        base = FB + buf * 32
        off = st.chunks[C_K + c]['off']
        for k in range(4):
            e("ds_read_b128 %s, v%d offset:%d" % (vr(base + 4 * k, 4), vKA[k], off))
    def p2_mfma(c, buf, half):
        base = FB + buf * 32
        kt, db = divmod(c, 4)
        for k in range(2 * half, 2 * half + 2):
            s = 4 * db + k
            for t in range(2):
                acc = ACC + (kt * 2 + t) * 16
                cc = "0" if s == 0 else vr(acc, 16)
                e("v_mfma_f32_32x32x16_bf16 %s, %s, %s, %s" % (vr(acc, 16), vr(base + 4 * k, 4), ar((s * 2 + t) * 4, 4), cc))
            st.emit_one()
    st.wait(C_K + 0)
    p2_reads(0, 0)
    for c in range(16):
        e("s_waitcnt lgkmcnt(0)")
        st.release(C_K + c)
        p2_mfma(c, c & 1, 0)
        if c + 1 < 16:
            st.wait(C_K + c + 1)
            p2_reads(c + 1, (c + 1) & 1)
        p2_mfma(c, c & 1, 1)
    st.emit_all()
    e("s_nop 15")

    stamp()
    cm("==== phase 3: softmax ====")
    e("s_mov_b32 s%d, 0xffff0000" % sMask)
    vM = [vS + 0, vS + 1]
    def accreg(kt, t, i): return ACC + (kt * 2 + t) * 16 + i
    for t in range(2):
        for kt in range(4):
            for i in range(0, 16, 2):
                a0, a1 = accreg(kt, t, i), accreg(kt, t, i + 1)
                e("v_cvt_pk_bf16_f32 v%d, v%d, v%d" % (a1, a0, a1))
                e("v_lshlrev_b32 v%d, 16, v%d" % (a0, a1))
                e("v_and_b32 v%d, s%d, v%d" % (a1, sMask, a1))
    mreg = [vS + 0, vS + 2]
    lreg = [vS + 1, vS + 3]
    tmpm = [vS + 4, vS + 5]
    for t in range(2):
        vals = [accreg(kt, t, i) for kt in range(4) for i in range(16)]
        e("v_max_f32 v%d, v%d, v%d" % (mreg[t], vals[0], vals[1]))
        e("v_max_f32 v%d, v%d, v%d" % (tmpm[t], vals[2], vals[3]))
    for idx in range(4, 64, 4):
        for t in range(2):
            vals = [accreg(kt, t, i) for kt in range(4) for i in range(16)]
            e("v_max3_f32 v%d, v%d, v%d, v%d" % (mreg[t], mreg[t], vals[idx], vals[idx + 1]))
            e("v_max3_f32 v%d, v%d, v%d, v%d" % (tmpm[t], tmpm[t], vals[idx + 2], vals[idx + 3]))
    for t in range(2):
        e("v_max_f32 v%d, v%d, v%d" % (mreg[t], mreg[t], tmpm[t]))
    nmc = [vS + 6, vS + 7]
    for t in range(2):
        e("v_mul_f32 v%d, s%d, v%d" % (nmc[t], sC, mreg[t]))
    for kt in range(4):
        for i in range(16):
            for t in range(2):
                a = accreg(kt, t, i)
                e("v_fma_f32 v%d, v%d, s%d, -v%d" % (a, a, sC, nmc[t]))
            for t in range(2):
                a = accreg(kt, t, i)
                e("v_exp_f32 v%d, v%d" % (a, a))
    e("s_nop 0")
    sp = [[vS + 8, vS + 9], [vS + 10, vS + 11]]
    for t in range(2):
        vals = [accreg(kt, t, i) for kt in range(4) for i in range(16)]
        e("v_add_f32 v%d, v%d, v%d" % (sp[t][0], vals[0], vals[1]))
        e("v_add_f32 v%d, v%d, v%d" % (sp[t][1], vals[2], vals[3]))
    for idx in range(4, 64, 2):
        for t in range(2):
            vals = [accreg(kt, t, i) for kt in range(4) for i in range(16)]
            e("v_add_f32 v%d, v%d, v%d" % (sp[t][0], sp[t][0], vals[idx]))
            e("v_add_f32 v%d, v%d, v%d" % (sp[t][1], sp[t][1], vals[idx + 1]))
    for t in range(2):
        e("v_add_f32 v%d, v%d, v%d" % (lreg[t], sp[t][0], sp[t][1]))
    e("s_lshl_b32 s%d, s%d, 10" % (sT, sW))
    e("s_add_u32 s%d, s%d, %d" % (sT, sT, SH))
    e("v_lshlrev_b32 v%d, 3, v%d" % (vT0, vQ32))
    e("v_lshl_add_u32 v%d, v%d, 9, v%d" % (vT1, vHf, vT0))
    e("v_add_u32 v%d, s%d, v%d" % (vA0, sT, vT1))
    e("v_add_u32 v%d, %d, v%d" % (vA1, SH, vT0))
    for t in range(2):
        e("ds_write_b64 v%d, %s offset:%d" % (vA0, vr(mreg[t], 2), t * 256))
    barrier()
    ML = FB
    for t in range(2):
        for k in range(8):
            e("ds_read_b64 %s, v%d offset:%d" % (vr(ML + (t * 8 + k) * 2, 2), vA1, k * 512 + t * 256))
        e("s_waitcnt lgkmcnt(0)")
    barrier()
    fac = [vS + 12, vS + 13]
    for t in range(2):
        mm = vS + 14 + t
        ms = [ML + (t * 8 + k) * 2 for k in range(8)]
        e("v_max3_f32 v%d, v%d, v%d, v%d" % (mm, ms[0], ms[1], ms[2]))
        e("v_max3_f32 v%d, v%d, v%d, v%d" % (mm, mm, ms[3], ms[4]))
        e("v_max3_f32 v%d, v%d, v%d, v%d" % (mm, mm, ms[5], ms[6]))
        e("v_max_f32 v%d, v%d, v%d" % (mm, mm, ms[7]))
        for k in range(8):
            e("v_sub_f32 v%d, v%d, v%d" % (ms[k], ms[k], mm))
            e("v_mul_f32 v%d, s%d, v%d" % (ms[k], sC, ms[k]))
            e("v_exp_f32 v%d, v%d" % (ms[k], ms[k]))
        e("s_nop 0")
        lg = vS + 16 + t
        e("v_mul_f32 v%d, v%d, v%d" % (lg, ms[0], ms[0] + 1))
        for k in range(1, 8):
            e("v_fmac_f32 v%d, v%d, v%d" % (lg, ms[k], ms[k] + 1))
        e("v_rcp_f32 v%d, v%d" % (lg, lg))
        e("v_sub_f32 v%d, v%d, v%d" % (fac[t], mreg[t], mm))
        e("v_mul_f32 v%d, s%d, v%d" % (fac[t], sC, fac[t]))
        e("v_exp_f32 v%d, v%d" % (fac[t], fac[t]))
        e("s_nop 0")
        e("v_mul_f32 v%d, v%d, v%d" % (fac[t], fac[t], lg))
    e("s_lshl_b32 s%d, s%d, 8" % (sT, sW))
    e("s_add_u32 s%d, s%d, %d" % (sT, sT, SH))
    e("v_and_b32 v%d, 15, v%d" % (vT0, vQ32))
    e("v_lshlrev_b32 v%d, 4, v%d" % (vT0, vT0))
    e("v_lshl_add_u32 v%d, v%d, 10, v%d" % (vT0, vQ32, vT0))
    e("v_lshl_add_u32 v%d, v%d, 3, v%d" % (vT1, vHf, vT0))
    e("v_add_u32 v%d, s%d, v%d" % (vA0, sT, vT1))
    for kt in range(4):
        for g in range(4):
            e("v_xor_b32 v%d, %d, v%d" % (vA1, (4 * kt + g) << 4, vA0))
            for t in range(2):
                a = accreg(kt, t, 4 * g)
                for i in range(4):
                    e("v_mul_f32 v%d, v%d, v%d" % (a + i, a + i, fac[t]))
                pk = vS + 18 + 2 * t
                e("v_cvt_pk_bf16_f32 v%d, v%d, v%d" % (pk, a, a + 1))
                e("v_cvt_pk_bf16_f32 v%d, v%d, v%d" % (pk + 1, a + 2, a + 3))
                e("ds_write_b64 v%d, %s offset:%d" % (vA1, vr(pk, 2), t * 32768))
    vPR = [vS + 0, vS + 1, vS + 2, vS + 3, vS + 4, vS + 5, vS + 6, vS + 7]
    e("v_and_b32 v%d, 15, v%d" % (vT0, vQ32))
    e("v_xor_b32 v%d, v%d, v%d" % (vT0, vHf, vT0))
    e("v_lshlrev_b32 v%d, 4, v%d" % (vT0, vT0))
    e("v_lshl_add_u32 v%d, v%d, 10, v%d" % (vT0, vQ32, vT0))
    e("v_add_u32 v%d, %d, v%d" % (vA2, SH, vT0))
    e("s_waitcnt lgkmcnt(0)")
    for k in range(8):
        e("v_xor_b32 v%d, %d, v%d" % (vPR[k], (2 * k) << 4, vA2))
    e("s_barrier")

    stamp()
    cm("==== phase 4 ====")
    def p4_reads(j, buf):
        base = FB + buf * 32
        off = st.chunks[C_V + j]['off']
        for ks in range(2):
            for D in range(2):
                for a in range(2):
                    r = base + (ks * 2 + D) * 4 + a * 2
                    e("ds_read_b64_tr_b16 %s, v%d offset:%d" % (vr(r, 2), vTR[D], off + (16 * ks + 4 * a) * 128))
            s = 2 * j + ks
            for t in range(2):
                r = base + 16 + (ks * 2 + t) * 4
                e("ds_read_b128 %s, v%d offset:%d" % (vr(r, 4), vPR[s & 7], (s >> 3) * 256 + t * 32768))
    def p4_mfma(j, buf, half):
        base = FB + buf * 32
        ks = half
        for D in range(2):
            for t in range(2):
                acc = ACC + (D * 2 + t) * 16
                c = "0" if (j == 0 and ks == 0) else vr(acc, 16)
                e("v_mfma_f32_32x32x16_bf16 %s, %s, %s, %s" % (vr(acc, 16), vr(base + (ks * 2 + D) * 4, 4), vr(base + 16 + (ks * 2 + t) * 4, 4), c))
                if (D * 2 + t) % 2 == 1:
                    st.emit_one()
    st.wait(C_V + 0)
    p4_reads(0, 0)
    for j in range(16):
        e("s_waitcnt lgkmcnt(0)")
        st.release(C_V + j)
        p4_mfma(j, j & 1, 0)
        if j + 1 < 16:
            st.wait(C_V + j + 1)
            p4_reads(j + 1, (j + 1) & 1)
        p4_mfma(j, j & 1, 1)
    st.emit_all()
    stamp()
    e("s_barrier")
    e("s_nop 15")
    e("s_lshr_b32 s%d, s%d, 1" % (sT, sW))
    e("s_lshl_b32 s%d, s%d, 8" % (sT, sT))
    e("s_add_u32 s%d, s%d, %d" % (sT, sT, SH))
    e("s_and_b32 s%d, s%d, 1" % (sT2, sW))
    e("s_lshl_b32 s%d, s%d, 3" % (sT2, sT2))
    e("v_and_b32 v%d, 15, v%d" % (vT0, vQ32))
    e("v_xor_b32 v%d, v%d, v%d" % (vT0, vHf, vT0))
    e("v_xor_b32 v%d, s%d, v%d" % (vT0, sT2, vT0))
    e("v_lshlrev_b32 v%d, 4, v%d" % (vT0, vT0))
    e("v_lshl_add_u32 v%d, v%d, 9, v%d" % (vT0, vQ32, vT0))
    e("v_add_u32 v%d, s%d, v%d" % (vA0, sT, vT0))
    for D in range(2):
        for t in range(2):
            acc = ACC + (D * 2 + t) * 16
            for g in range(4):
                e("v_cvt_pk_bf16_f32 v%d, v%d, v%d" % (vS + 8, acc + 4 * g, acc + 4 * g + 1))
                e("v_cvt_pk_bf16_f32 v%d, v%d, v%d" % (vS + 9, acc + 4 * g + 2, acc + 4 * g + 3))
                e("v_xor_b32 v%d, %d, v%d" % (vA1, (4 * D + 2 * (g & 1)) << 4, vA0))
                e("ds_write_b64 v%d, %s offset:%d" % (vA1, vr(vS + 8, 2), t * 16384 + (g >> 1) * 8))
    barrier()
    e("v_and_b32 v%d, 15, v%d" % (vT0, vLane))
    e("v_lshrrev_b32 v%d, 4, v%d" % (vT1, vLane))
    e("v_xor_b32 v%d, v%d, v%d" % (vT1, vT1, vT0))
    e("v_lshlrev_b32 v%d, 4, v%d" % (vT1, vT1))
    e("v_lshl_add_u32 v%d, v%d, 9, v%d" % (vT1, vT0, vT1))
    e("v_add_u32 v%d, %d, v%d" % (vA0, SH, vT1))
    for T3 in range(4):
        e("v_xor_b32 v%d, %d, v%d" % (vA1, (4 * T3) << 4, vA0))
        for Th in range(2):
            T = Th * 4 + T3
            for qt in range(4):
                e("ds_read_b128 %s, v%d offset:%d" % (ar((T * 4 + qt) * 4, 4), vA1, qt * 8192 + Th * 256))
        e("s_waitcnt lgkmcnt(0)")

    stamp()
    cm("==== phase 5 ====")
    def p5_reads(T, buf):
        base = FB + buf * 32
        off = st.chunks[C_WO + T]['off']
        for ct in range(7):
            for a in range(2):
                e("ds_read_b64_tr_b16 %s, v%d offset:%d" % (vr(base + ct * 4 + a * 2, 2), vWOr, off + a * 16 * 224 + ct * 32))
    def p5_mfma(T, buf, cts):
        base = FB + buf * 32
        for ct in cts:
            for qt in range(4):
                acc = ACC + (ct * 4 + qt) * 4
                c = "0" if T == 0 else vr(acc, 4)
                e("v_mfma_f32_16x16x32_bf16 %s, %s, %s, %s" % (vr(acc, 4), vr(base + ct * 4, 4), ar((T * 4 + qt) * 4, 4), c))
            st.emit_one()
    st.wait(C_WO + 0)
    p5_reads(0, 0)
    for T in range(8):
        e("s_waitcnt lgkmcnt(0)")
        st.release(C_WO + T)
        p5_mfma(T, T & 1, [0, 1, 2, 3])
        if T + 1 < 8:
            st.wait(C_WO + T + 1)
            p5_reads(T + 1, (T + 1) & 1)
        p5_mfma(T, T & 1, [4, 5, 6])
    st.emit_all()
    e("s_nop 15")
    stamp()
    e("v_lshlrev_b32 v%d, 4, v%d" % (vA0, vLane))
    for ti in range(28):
        acc = ACC + ti * 4
        if ti % 4 == 0:
            e("s_add_u32 s%d, s%d, %d" % (sT, sPb, ti * 1024))
        e("buffer_store_dwordx4 %s, v%d, s[%d:%d], s%d offen offset:%d" % (vr(acc, 4), vA0, sWS, sWS + 3, sT, (ti % 4) * 1024))
    e("s_waitcnt vmcnt(0)")
    stamp()
    stamp_flush()
    lab("L_main_end")
    e("s_endpgm")

def gen_reduce():
    L.append(".p2align 8")
    L.append(".globl reduce_kernel")
    L.append(".type reduce_kernel,@function")
    lab("reduce_kernel")
    e("s_cmp_ge_u32 s2, 448")
    e("s_cbranch_scc1 L_red_end")
    e("s_load_dwordx2 s[4:5], s[0:1], 40")
    e("s_load_dwordx2 s[6:7], s[0:1], 56")
    e("v_lshrrev_b32 v1, 6, v0")
    e("v_and_b32 v2, 63, v0")
    e("s_and_b32 s20, s2, 7")
    e("v_readfirstlane_b32 s21, v1")
    e("s_lshr_b32 s22, s2, 3")
    e("s_cmp_ge_u32 s22, 28")
    e("s_cselect_b32 s23, 1, 0")
    e("s_mul_i32 s24, s23, 28")
    e("s_sub_u32 s24, s22, s24")
    e("s_waitcnt lgkmcnt(0)")
    srd(8, 4, 8 * 128 * 448 * 2)
    srd(12, 6, 256 * 4 * 28 * 1024)
    e("s_lshl_b32 s25, s23, 3")
    e("s_add_u32 s25, s25, s20")
    e("s_lshl_b32 s25, s25, 2")
    e("s_add_u32 s25, s25, s21")
    e("s_mul_i32 s25, s25, 28")
    e("s_add_u32 s25, s25, s24")
    e("s_lshl_b32 s25, s25, 10")
    e("v_lshlrev_b32 v3, 4, v2")
    e("s_nop 4")
    for h in range(16):
        e("s_add_u32 s26, s25, %d" % (h * 16 * 4 * 28 * 1024))
        e("buffer_load_dwordx4 v[%d:%d], v3, s[12:15], s26 offen" % (8 + 4 * h, 11 + 4 * h))
    e("s_and_b32 s27, s24, 3")
    e("s_lshr_b32 s28, s24, 2")
    e("s_lshl_b32 s29, s20, 7")
    e("s_lshl_b32 s30, s23, 6")
    e("s_add_u32 s29, s29, s30")
    e("s_lshl_b32 s30, s27, 4")
    e("s_add_u32 s29, s29, s30")
    e("s_mul_i32 s29, s29, 896")
    e("s_mul_i32 s30, s21, 224")
    e("s_add_u32 s29, s29, s30")
    e("s_lshl_b32 s30, s28, 5")
    e("s_add_u32 s29, s29, s30")
    e("v_and_b32 v4, 15, v2")
    e("v_mul_u32_u24 v4, 896, v4")
    e("v_lshrrev_b32 v5, 4, v2")
    e("v_lshl_add_u32 v4, v5, 3, v4")
    for h in range(1, 16):
        e("s_waitcnt vmcnt(%d)" % (15 - h))
        for i in range(4):
            e("v_add_f32 v%d, v%d, v%d" % (8 + i, 8 + i, 8 + 4 * h + i))
    e("v_cvt_pk_bf16_f32 v8, v8, v9")
    e("v_cvt_pk_bf16_f32 v9, v10, v11")
    e("buffer_store_dwordx2 v[8:9], v4, s[8:11], s29 offen")
    e("s_waitcnt vmcnt(0)")
    lab("L_red_end")
    e("s_endpgm")

HEADER = """; Kernarg layout for this problem (64 bytes, ptrs only, base s[0:1]):
;   offset   0: d_in[0] x  shape=(8, 128, 448) dtype=bfloat16
;   offset   8: d_in[1] k_cache  shape=(8, 16, 512, 256) dtype=bfloat16
;   offset  16: d_in[2] v_cache  shape=(8, 16, 512, 256) dtype=bfloat16
;   offset  24: d_in[3] wq  shape=(448, 4096) dtype=bfloat16
;   offset  32: d_in[4] wo  shape=(4096, 448) dtype=bfloat16
;   offset  40: d_out     shape=(8, 128, 448) dtype=bfloat16
;   offset  48: d_debug   256 bytes
;   offset  56: d_ws      268435456 bytes workspace
; generated by gen.py
; @launch kernel=%s_kernel grid=(256,1,1) block=(256,1,1) lds=%d
; @launch kernel=reduce_kernel grid=(448,1,1) block=(256,1,1) lds=0
.amdgcn_target "amdgcn-amd-amdhsa--gfx950"
.text
.globl %s_kernel
.p2align 8
.type %s_kernel,@function
""" % (NAME, LDS_TOTAL, NAME, NAME)

FOOTER = """.section .rodata,"a"
.p2align 6
.amdhsa_kernel %s_kernel
  .amdhsa_next_free_vgpr 384
  .amdhsa_next_free_sgpr 102
  .amdhsa_accum_offset 256
  .amdhsa_group_segment_fixed_size 0
  .amdhsa_kernarg_size 64
  .amdhsa_user_sgpr_count 2
  .amdhsa_user_sgpr_kernarg_segment_ptr 1
  .amdhsa_system_sgpr_workgroup_id_x 1
.end_amdhsa_kernel
.p2align 6
.amdhsa_kernel reduce_kernel
  .amdhsa_next_free_vgpr 80
  .amdhsa_next_free_sgpr 40
  .amdhsa_accum_offset 80
  .amdhsa_group_segment_fixed_size 0
  .amdhsa_kernarg_size 64
  .amdhsa_user_sgpr_count 2
  .amdhsa_user_sgpr_kernarg_segment_ptr 1
  .amdhsa_system_sgpr_workgroup_id_x 1
.end_amdhsa_kernel
""" % NAME

gen_main()
gen_reduce()
with open(OUT, "w") as f:
    f.write(HEADER + "\n".join(L) + "\n" + FOOTER)
print("wrote", OUT, len(L), "lines")
```

```python
import struct, sys, os
KVPOL = os.environ.get("KVPOL", " nt")
STPOL = os.environ.get("STPOL", "")

OUT = sys.argv[1] if len(sys.argv) > 1 else "standalone__mha_block_cached__near_ridge.s"
NAME = "standalone__mha_block_cached__near_ridge"

L = []
def e(s): L.append("    " + s)
def lab(s): L.append(s + ":")
def cm(s): L.append("    ; " + s)

def f32bits(x): return struct.unpack("<I", struct.pack("<f", x))[0]

RING = 24576
SH = 4 * RING
LDS_TOTAL = 163840

sX, sK, sV, sWQ, sWO, sWS = 20, 24, 28, 32, 36, 40
sW = 44
sRing = 45
sXb, sWQb, sKb, sVb, sWOb, sPb = 46, 47, 48, 49, 50, 51
sT = 52
sC = 53
sB, sH, sHalf = 54, 55, 56
sT2 = 57
sMask = 58
sKc = [96, 97, 98, 99]

vLane = 1
vQ32 = 2
vHf = 3
vT0, vT1, vT2, vT3 = 4, 5, 6, 7
vXK = [8, 9, 10, 11]
vKA = [12, 13, 14, 15]
vTR = [16, 17]
vWOr = 18
vDX = [19, 20]
vDWQ = 21
vDK = [22, 23]
vDV = 24
vDWO = [25, 26, 27, 28, 29, 30, 31]
vA0, vA1, vA2, vA3, vA4, vA5, vA6 = 32, 33, 34, 35, 36, 37, 38
vSTG = 39
vS = 40
FB = 64
ACC = 128

def vr(b, n): return "v[%d:%d]" % (b, b + n - 1)
def ar(b, n): return "a[%d:%d]" % (b, b + n - 1)

DMA_AREA = 16384
STG = 16384
class Stream:
    def __init__(self):
        self.chunks = []
        self.vm_issued = 0
        self.last_instr = {}
        self.pending = []
        self.pos = 0
        self.dma_next = 0
        self.stg_flip = 0
    def add(self, kind, idx, size, mode, reg=None):
        ch = dict(kind=kind, idx=idx, size=size, mode=mode, reg=reg)
        if mode == 'dma':
            if self.pos + size > DMA_AREA:
                self.pos = 0
            ch['off'] = self.pos
            self.pos += size
        else:
            if size == 4096:
                ch['off'] = STG + 4096 * self.stg_flip
                self.stg_flip ^= 1
            else:
                ch['off'] = STG
        self.chunks.append(ch)
        return len(self.chunks) - 1
    def dep(self, c):
        a = self.chunks[c]
        for p in range(c - 1, -1, -1):
            b = self.chunks[p]
            if b['mode'] != 'dma': continue
            if a['off'] < b['off'] + b['size'] and b['off'] < a['off'] + a['size']:
                return p
        return -1
    def queue(self, c):
        n = self.chunks[c]['size'] // 1024
        for i in range(n):
            self.pending.append((c, i))
        self.pending.sort()
    def release(self, consumed):
        while self.dma_next < len(self.chunks):
            c = self.dma_next
            if self.chunks[c]['mode'] != 'dma':
                self.dma_next += 1
                continue
            if self.dep(c) <= consumed:
                self.queue(c)
                self.dma_next += 1
            else:
                break
    def emit_one(self):
        if not self.pending:
            return False
        c, n = self.pending.pop(0)
        ch = self.chunks[c]
        emit_load(ch, n)
        self.vm_issued += 1
        self.last_instr[c] = self.vm_issued
        return True
    def emit_all(self):
        while self.emit_one():
            pass
    def wait(self, c):
        while any(p[0] <= c for p in self.pending):
            self.emit_one()
        n = self.vm_issued - self.last_instr[c]
        e("s_waitcnt vmcnt(%d)" % min(n, 63))
    def stage(self, c):
        ch = self.chunks[c]
        assert ch['mode'] == 'reg'
        self.wait(c)
        for n in range(ch['size'] // 1024):
            e("ds_write_b128 v%d, %s offset:%d" % (vSTG, ar(ch['reg'] + 4 * n, 4), ch['off'] + n * 1024))

def emit_load(ch, n):
    kind, idx = ch['kind'], ch['idx']
    dma = ch['mode'] == 'dma'
    if dma:
        e("s_add_u32 m0, s%d, %d" % (sRing, ch['off'] + n * 1024))
    if kind == 'wq':
        e("s_add_u32 s%d, s%d, %d" % (sT, sWQb, (32 * idx + 8 * n) * 8192))
        vo, sr, pol = vDWQ, sWQ, ""
    elif kind == 'k':
        kt, db = idx
        e("s_add_u32 s%d, s%d, %d" % (sT, sKc[db], (32 * kt + 8 * n) * 512))
        vo, sr, pol = vDK[n & 1], sK, KVPOL
    elif kind == 'v':
        e("s_add_u32 s%d, s%d, %d" % (sT, sVb, (32 * idx + 8 * n) * 512))
        vo, sr, pol = vDV, sV, KVPOL
    elif kind == 'wo':
        e("s_add_u32 s%d, s%d, %d" % (sT, sWOb, (32 * idx) * 896))
        vo, sr, pol = vDWO[n], sWO, ""
    if dma:
        e("buffer_load_dwordx4 v%d, s[%d:%d], s%d offen%s lds" % (vo, sr, sr + 3, sT, pol))
    else:
        e("buffer_load_dwordx4 %s, v%d, s[%d:%d], s%d offen%s" % (ar(ch['reg'] + 4 * n, 4), vo, sr, sr + 3, sT, pol))

def run_phase(st, cl, reads, mfma_half, hook=None):
    n = len(cl)
    def prep(i):
        c = cl[i]
        if st.chunks[c]['mode'] == 'dma':
            st.wait(c)
        reads(i, i & 1)
    def stg(i):
        if i < n and st.chunks[cl[i]]['mode'] == 'reg':
            st.stage(cl[i])
    single = any(st.chunks[c]['mode'] == 'reg' and st.chunks[c]['size'] != 4096 for c in cl)
    stg(0)
    if not single: stg(1)
    prep(0)
    for i in range(n):
        e("s_waitcnt lgkmcnt(0)")
        st.release(cl[i])
        if hook: hook(i)
        mfma_half(i, i & 1, 0)
        if single:
            stg(i + 1)
        else:
            stg(i + 2)
        if i + 1 < n:
            prep(i + 1)
        mfma_half(i, i & 1, 1)

def srd(s, lo, nbytes):
    e("s_mov_b32 s%d, s%d" % (s, lo))
    e("s_and_b32 s%d, s%d, 0xffff" % (s + 1, lo + 1))
    e("s_mov_b32 s%d, %d" % (s + 2, nbytes))
    e("s_mov_b32 s%d, 0x00020000" % (s + 3))

import os
STAMPS = bool(os.environ.get("GEN_STAMPS"))
nstamp = [0]
def stamp():
    if not STAMPS: return
    i = nstamp[0]; nstamp[0] += 1
    e("s_memtime s[%d:%d]" % (64 + 2 * i, 65 + 2 * i))
    e("s_waitcnt lgkmcnt(0)")
def stamp_flush():
    if not STAMPS: return
    e("s_mov_b32 s%d, 0x10000000" % (sWS + 2))
    e("s_lshl_b32 s%d, s2, 2" % sT)
    e("s_add_u32 s%d, s%d, s%d" % (sT, sT, sW))
    e("s_lshl_b32 s%d, s%d, 8" % (sT, sT))
    e("s_add_u32 s%d, s%d, %d" % (sT, sT, 128 << 20))
    e("v_mov_b32 v%d, 0" % vA1)
    for i in range(nstamp[0]):
        e("v_mov_b32 v%d, s%d" % (vS, 64 + 2 * i))
        e("v_mov_b32 v%d, s%d" % (vS + 1, 65 + 2 * i))
        e("buffer_store_dwordx2 %s, v%d, s[%d:%d], s%d offen offset:%d" % (vr(vS, 2), vA1, sWS, sWS + 3, sT, 8 * i))
        e("s_nop 2")

def barrier():
    e("s_waitcnt lgkmcnt(0)")
    e("s_barrier")

def gen_main():
    lab(NAME + "_kernel")
    e("s_cmp_ge_u32 s2, 256")
    e("s_cbranch_scc1 L_main_end")
    stamp()
    if STAMPS:
        e("s_memrealtime s[92:93]")
        e("s_waitcnt lgkmcnt(0)")
    e("s_load_dwordx8 s[4:11], s[0:1], 0")
    e("s_load_dwordx8 s[12:19], s[0:1], 32")
    e("v_lshrrev_b32 v%d, 6, v0" % vT0)
    e("v_and_b32 v%d, 63, v0" % vLane)
    e("s_and_b32 s%d, s2, 7" % sB)
    e("v_readfirstlane_b32 s%d, v%d" % (sW, vT0))
    e("s_lshr_b32 s%d, s2, 4" % sH)
    e("s_lshr_b32 s%d, s2, 3" % sHalf)
    e("s_and_b32 s%d, s%d, 1" % (sHalf, sHalf))
    e("s_mov_b32 s%d, 0x%08x" % (sC, f32bits(1.4426950408889634 / 16.0)))
    e("v_and_b32 v%d, 31, v%d" % (vQ32, vLane))
    e("v_lshrrev_b32 v%d, 5, v%d" % (vHf, vLane))
    e("s_mul_i32 s%d, s%d, %d" % (sRing, sW, RING))
    e("s_waitcnt lgkmcnt(0)")
    srd(sX, 4, 8 * 128 * 448 * 2)
    srd(sK, 6, 8 * 16 * 512 * 256 * 2)
    srd(sV, 8, 8 * 16 * 512 * 256 * 2)
    srd(sWQ, 10, 448 * 4096 * 2)
    srd(sWO, 12, 4096 * 448 * 2)
    srd(sWS, 18, 256 * 4 * 28 * 1024)
    e("s_lshl_b32 s%d, s%d, 1" % (sT, sB))
    e("s_add_u32 s%d, s%d, s%d" % (sT, sT, sHalf))
    e("s_mul_i32 s%d, s%d, %d" % (sXb, sT, 64 * 896))
    e("s_lshl_b32 s%d, s%d, 9" % (sWQb, sH))
    e("s_lshl_b32 s%d, s%d, 7" % (sT, sW))
    e("s_add_u32 s%d, s%d, s%d" % (sWQb, sWQb, sT))
    e("s_lshl_b32 s%d, s%d, 4" % (sT, sB))
    e("s_add_u32 s%d, s%d, s%d" % (sT, sT, sH))
    e("s_lshl_b32 s%d, s%d, 18" % (sT, sT))
    e("s_lshl_b32 s%d, s%d, 16" % (sT2, sW))
    e("s_add_u32 s%d, s%d, s%d" % (sKb, sT, sT2))
    e("s_lshl_b32 s%d, s%d, 7" % (sT2, sW))
    e("s_add_u32 s%d, s%d, s%d" % (sVb, sT, sT2))
    for db in range(4):
        e("s_add_u32 s%d, s%d, %d" % (sT2, sW, db))
        e("s_and_b32 s%d, s%d, 3" % (sT2, sT2))
        e("s_lshl_b32 s%d, s%d, 7" % (sT2, sT2))
        e("s_add_u32 s%d, s%d, s%d" % (sKc[db], sKb, sT2))
    e("s_mul_i32 s%d, s%d, %d" % (sWOb, sH, 256 * 896))
    e("s_mul_i32 s%d, s%d, 224" % (sT, sW))
    e("s_add_u32 s%d, s%d, s%d" % (sWOb, sWOb, sT))
    e("s_lshl_b32 s%d, s2, 2" % sT)
    e("s_add_u32 s%d, s%d, s%d" % (sT, sT, sW))
    e("s_mul_i32 s%d, s%d, %d" % (sPb, sT, 28 * 1024))

    cm("DMA voffsets")
    r8, p8 = vT0, vT1
    e("v_lshrrev_b32 v%d, 3, v%d" % (r8, vLane))
    e("v_and_b32 v%d, 7, v%d" % (p8, vLane))
    e("v_lshrrev_b32 v%d, 1, v%d" % (vT2, r8))
    e("v_xor_b32 v%d, v%d, v%d" % (vT3, p8, vT2))
    e("v_lshlrev_b32 v%d, 4, v%d" % (vA0, vT3))
    e("v_xor_b32 v%d, 64, v%d" % (vA1, vA0))
    e("v_mul_u32_u24 v%d, 896, v%d" % (vA2, r8))
    e("v_add_u32 v%d, v%d, v%d" % (vDX[0], vA2, vA0))
    e("v_add_u32 v%d, v%d, v%d" % (vDX[1], vA2, vA1))
    e("v_lshlrev_b32 v%d, 9, v%d" % (vA2, r8))
    e("v_add_u32 v%d, v%d, v%d" % (vDK[0], vA2, vA0))
    e("v_add_u32 v%d, v%d, v%d" % (vDK[1], vA2, vA1))
    e("v_and_b32 v%d, 1, v%d" % (vT3, vT2))
    e("v_lshlrev_b32 v%d, 2, v%d" % (vT3, vT3))
    e("v_xor_b32 v%d, v%d, v%d" % (vT3, p8, vT3))
    e("v_lshlrev_b32 v%d, 4, v%d" % (vT3, vT3))
    e("v_add_u32 v%d, v%d, v%d" % (vDV, vA2, vT3))
    e("v_lshlrev_b32 v%d, 13, v%d" % (vA2, r8))
    e("v_add_u32 v%d, v%d, v%d" % (vDWQ, vA2, vT3))
    for n in range(7):
        e("v_add_u32 v%d, %d, v%d" % (vT0, 64 * n, vLane))
        e("v_mul_u32_u24 v%d, 4682, v%d" % (vT1, vT0))
        e("v_lshrrev_b32 v%d, 16, v%d" % (vT1, vT1))
        e("v_mul_u32_u24 v%d, 14, v%d" % (vT2, vT1))
        e("v_sub_u32 v%d, v%d, v%d" % (vT2, vT0, vT2))
        e("v_mul_u32_u24 v%d, 896, v%d" % (vT1, vT1))
        e("v_lshlrev_b32 v%d, 4, v%d" % (vT2, vT2))
        e("v_add_u32 v%d, v%d, v%d" % (vDWO[n], vT1, vT2))
    e("s_nop 4")

    st = Stream()
    cWQ = [st.add('wq', j, 4096, 'dma') for j in range(14)]
    cK = []
    for c in range(16):
        kt, db = divmod(c, 4)
        if c < 8: cK.append(st.add('k', (kt, db), 4096, 'reg', 128 + 16 * c))
        else: cK.append(st.add('k', (kt, db), 4096, 'dma'))
    cV = []
    for j in range(16):
        if j < 8: cV.append(st.add('v', j, 4096, 'reg', 128 + 16 * j))
        else: cV.append(st.add('v', j, 4096, 'dma'))
    cWO = []
    for t in range(8):
        if t < 4: cWO.append(st.add('wo', t, 7168, 'reg', 28 * t))
        else: cWO.append(st.add('wo', t, 7168, 'dma'))
    e("v_lshlrev_b32 v%d, 4, v%d" % (vSTG, vLane))
    e("v_add_u32 v%d, s%d, v%d" % (vSTG, sRing, vSTG))

    cm("x tile DMA")
    e("s_mul_i32 s%d, s%d, 14" % (sT2, sW))
    for k in range(14):
        e("s_add_u32 s60, s%d, %d" % (sT2, k))
        e("s_lshr_b32 s61, s60, 3")
        e("s_and_b32 s62, s60, 7")
        e("s_lshl_b32 s63, s60, 10")
        e("s_add_u32 m0, s63, %d" % SH)
        e("s_mul_i32 s63, s62, %d" % (8 * 896))
        e("s_lshl_b32 s61, s61, 7")
        e("s_add_u32 s63, s63, s61")
        e("s_add_u32 s63, s63, s%d" % sXb)
        e("buffer_load_dwordx4 v%d, s[%d:%d], s63 offen lds" % (vDX[k & 1], sX, sX + 3))
        st.vm_issued += 1
    x_last = st.vm_issued
    st.release(-1)
    st.emit_all()
    for c in range(8): st.queue(cK[c])

    cm("LDS read address regs")
    e("v_lshrrev_b32 v%d, 1, v%d" % (vT0, vQ32))
    e("v_and_b32 v%d, 7, v%d" % (vT0, vT0))
    e("v_lshlrev_b32 v%d, 7, v%d" % (vT1, vQ32))
    for k in range(4):
        e("v_add_u32 v%d, %d, v%d" % (vT2, 2 * k, vHf))
        e("v_xor_b32 v%d, v%d, v%d" % (vT2, vT2, vT0))
        e("v_lshl_add_u32 v%d, v%d, 4, v%d" % (vT2, vT2, vT1))
        e("v_add_u32 v%d, %d, v%d" % (vXK[k], SH, vT2))
        e("v_add_u32 v%d, s%d, v%d" % (vKA[k], sRing, vT2))
    e("v_lshrrev_b32 v%d, 4, v%d" % (vT0, vLane))
    e("v_and_b32 v%d, 1, v%d" % (vT0, vT0))
    e("v_and_b32 v%d, 15, v%d" % (vT1, vLane))
    e("v_lshrrev_b32 v%d, 2, v%d" % (vT2, vT1))
    e("v_and_b32 v%d, 3, v%d" % (vT3, vT1))
    e("v_lshl_add_u32 v%d, v%d, 3, v%d" % (vA0, vHf, vT2))
    e("v_lshlrev_b32 v%d, 7, v%d" % (vA0, vA0))
    e("v_lshrrev_b32 v%d, 1, v%d" % (vA1, vT3))
    e("v_lshl_add_u32 v%d, v%d, 1, v%d" % (vA1, vT0, vA1))
    e("v_lshrrev_b32 v%d, 1, v%d" % (vA2, vT2))
    e("v_lshlrev_b32 v%d, 2, v%d" % (vA2, vA2))
    e("v_xor_b32 v%d, v%d, v%d" % (vA1, vA1, vA2))
    e("v_lshl_add_u32 v%d, v%d, 4, v%d" % (vA0, vA1, vA0))
    e("v_and_b32 v%d, 1, v%d" % (vA1, vT3))
    e("v_lshl_add_u32 v%d, v%d, 3, v%d" % (vA0, vA1, vA0))
    e("v_add_u32 v%d, s%d, v%d" % (vTR[0], sRing, vA0))
    e("v_xor_b32 v%d, 64, v%d" % (vTR[1], vTR[0]))
    e("v_lshrrev_b32 v%d, 4, v%d" % (vA0, vLane))
    e("v_lshl_add_u32 v%d, v%d, 2, v%d" % (vA0, vA0, vT2))
    e("v_mul_u32_u24 v%d, 224, v%d" % (vA0, vA0))
    e("v_lshl_add_u32 v%d, v%d, 3, v%d" % (vA0, vT3, vA0))
    e("v_add_u32 v%d, s%d, v%d" % (vWOr, sRing, vA0))

    e("s_waitcnt vmcnt(%d)" % (st.vm_issued - x_last))
    e("s_barrier")

    stamp()
    cm("==== phase 1: Q^T = wq^T x^T ====")
    def p1_reads(j, buf):
        base = FB + buf * 32
        off = st.chunks[cWQ[j]]['off']
        for ks in range(2):
            for D in range(2):
                for a in range(2):
                    r = base + (ks * 2 + D) * 4 + a * 2
                    e("ds_read_b64_tr_b16 %s, v%d offset:%d" % (vr(r, 2), vTR[D], off + (16 * ks + 4 * a) * 128))
            s = 2 * j + ks
            for t in range(2):
                r = base + 16 + (ks * 2 + t) * 4
                e("ds_read_b128 %s, v%d offset:%d" % (vr(r, 4), vXK[s & 3], (s >> 2) * 8192 + t * 4096))
    def p1_mfma(j, buf, half):
        base = FB + buf * 32
        ks = half
        for D in range(2):
            for t in range(2):
                acc = ACC + (D * 2 + t) * 16
                c = "0" if (j == 0 and ks == 0) else vr(acc, 16)
                e("v_mfma_f32_32x32x16_bf16 %s, %s, %s, %s" % (vr(acc, 16), vr(base + (ks * 2 + D) * 4, 4), vr(base + 16 + (ks * 2 + t) * 4, 4), c))
                st.emit_one()
    run_phase(st, cWQ, p1_reads, p1_mfma)
    st.emit_all()
    stamp()
    e("s_barrier")
    e("s_nop 15")
    e("s_lshr_b32 s%d, s%d, 1" % (sT, sW))
    e("s_lshl_b32 s%d, s%d, 8" % (sT, sT))
    e("s_add_u32 s%d, s%d, %d" % (sT, sT, SH))
    e("s_and_b32 s%d, s%d, 1" % (sT2, sW))
    e("s_lshl_b32 s%d, s%d, 3" % (sT2, sT2))
    e("v_and_b32 v%d, 15, v%d" % (vT0, vQ32))
    e("v_xor_b32 v%d, s%d, v%d" % (vT0, sT2, vT0))
    e("v_lshlrev_b32 v%d, 4, v%d" % (vT0, vT0))
    e("v_lshl_add_u32 v%d, v%d, 9, v%d" % (vT0, vQ32, vT0))
    e("v_lshl_add_u32 v%d, v%d, 3, v%d" % (vT0, vHf, vT0))
    e("v_add_u32 v%d, s%d, v%d" % (vA0, sT, vT0))
    for D in range(2):
        for t in range(2):
            acc = ACC + (D * 2 + t) * 16
            for g in range(4):
                e("v_cvt_pk_bf16_f32 v%d, v%d, v%d" % (vS + 0, acc + 4 * g, acc + 4 * g + 1))
                e("v_cvt_pk_bf16_f32 v%d, v%d, v%d" % (vS + 1, acc + 4 * g + 2, acc + 4 * g + 3))
                e("v_xor_b32 v%d, %d, v%d" % (vA1, (4 * D + g) << 4, vA0))
                e("ds_write_b64 v%d, %s offset:%d" % (vA1, vr(vS, 2), t * 16384))
    barrier()
    e("v_and_b32 v%d, 15, v%d" % (vT0, vQ32))
    e("v_xor_b32 v%d, v%d, v%d" % (vT0, vHf, vT0))
    e("v_lshlrev_b32 v%d, 4, v%d" % (vT0, vT0))
    e("v_lshl_add_u32 v%d, v%d, 9, v%d" % (vT0, vQ32, vT0))
    e("v_add_u32 v%d, %d, v%d" % (vA0, SH, vT0))
    for db in range(4):
        e("s_add_u32 s%d, s%d, %d" % (sT2, sW, db))
        e("s_and_b32 s%d, s%d, 3" % (sT2, sT2))
        e("s_lshl_b32 s%d, s%d, 7" % (sT2, sT2))
        e("v_xor_b32 v%d, s%d, v%d" % (vA1, sT2, vA0))
        for k in range(4):
            sidx = 4 * db + k
            e("v_xor_b32 v%d, %d, v%d" % (vA2, k << 5, vA1))
            for t in range(2):
                e("ds_read_b128 %s, v%d offset:%d" % (ar((sidx * 2 + t) * 4, 4), vA2, t * 16384))
        e("s_waitcnt lgkmcnt(0)")

    stamp()
    cm("==== phase 2 ====")
    def p2_reads(c, buf):
        base = FB + buf * 32
        off = st.chunks[cK[c]]['off']
        for k in range(4):
            e("ds_read_b128 %s, v%d offset:%d" % (vr(base + 4 * k, 4), vKA[k], off))
    def p2_mfma(c, buf, half):
        base = FB + buf * 32
        kt, db = divmod(c, 4)
        for k in range(2 * half, 2 * half + 2):
            s = 4 * db + k
            for t in range(2):
                acc = ACC + (kt * 2 + t) * 16
                cc = "0" if s == 0 else vr(acc, 16)
                e("v_mfma_f32_32x32x16_bf16 %s, %s, %s, %s" % (vr(acc, 16), vr(base + 4 * k, 4), ar((s * 2 + t) * 4, 4), cc))
                st.emit_one()
    vq = set()
    def hook2(i):
        for j in range(8):
            if j <= i + 1 and j not in vq:
                vq.add(j); st.queue(cV[j])
    run_phase(st, cK, p2_reads, p2_mfma, hook2)
    for t in range(4): st.queue(cWO[t])
    st.emit_all()
    e("s_nop 15")

    stamp()
    cm("==== phase 3: softmax ====")
    e("s_mov_b32 s%d, 0xffff0000" % sMask)
    vM = [vS + 0, vS + 1]
    def accreg(kt, t, i): return ACC + (kt * 2 + t) * 16 + i
    for t in range(2):
        for kt in range(4):
            for i in range(0, 16, 2):
                a0, a1 = accreg(kt, t, i), accreg(kt, t, i + 1)
                e("v_cvt_pk_bf16_f32 v%d, v%d, v%d" % (a1, a0, a1))
                e("v_lshlrev_b32 v%d, 16, v%d" % (a0, a1))
                e("v_and_b32 v%d, s%d, v%d" % (a1, sMask, a1))
    mreg = [vS + 0, vS + 2]
    lreg = [vS + 1, vS + 3]
    tmpm = [vS + 4, vS + 5]
    for t in range(2):
        vals = [accreg(kt, t, i) for kt in range(4) for i in range(16)]
        e("v_max_f32 v%d, v%d, v%d" % (mreg[t], vals[0], vals[1]))
        e("v_max_f32 v%d, v%d, v%d" % (tmpm[t], vals[2], vals[3]))
    for idx in range(4, 64, 4):
        for t in range(2):
            vals = [accreg(kt, t, i) for kt in range(4) for i in range(16)]
            e("v_max3_f32 v%d, v%d, v%d, v%d" % (mreg[t], mreg[t], vals[idx], vals[idx + 1]))
            e("v_max3_f32 v%d, v%d, v%d, v%d" % (tmpm[t], tmpm[t], vals[idx + 2], vals[idx + 3]))
    for t in range(2):
        e("v_max_f32 v%d, v%d, v%d" % (mreg[t], mreg[t], tmpm[t]))
    nmc = [vS + 6, vS + 7]
    for t in range(2):
        e("v_mul_f32 v%d, s%d, v%d" % (nmc[t], sC, mreg[t]))
    for kt in range(4):
        for i in range(16):
            for t in range(2):
                a = accreg(kt, t, i)
                e("v_fma_f32 v%d, v%d, s%d, -v%d" % (a, a, sC, nmc[t]))
            for t in range(2):
                a = accreg(kt, t, i)
                e("v_exp_f32 v%d, v%d" % (a, a))
    e("s_nop 0")
    sp = [[vS + 8, vS + 9], [vS + 10, vS + 11]]
    for t in range(2):
        vals = [accreg(kt, t, i) for kt in range(4) for i in range(16)]
        e("v_add_f32 v%d, v%d, v%d" % (sp[t][0], vals[0], vals[1]))
        e("v_add_f32 v%d, v%d, v%d" % (sp[t][1], vals[2], vals[3]))
    for idx in range(4, 64, 2):
        for t in range(2):
            vals = [accreg(kt, t, i) for kt in range(4) for i in range(16)]
            e("v_add_f32 v%d, v%d, v%d" % (sp[t][0], sp[t][0], vals[idx]))
            e("v_add_f32 v%d, v%d, v%d" % (sp[t][1], sp[t][1], vals[idx + 1]))
    for t in range(2):
        e("v_add_f32 v%d, v%d, v%d" % (lreg[t], sp[t][0], sp[t][1]))
    e("s_lshl_b32 s%d, s%d, 10" % (sT, sW))
    e("s_add_u32 s%d, s%d, %d" % (sT, sT, SH))
    e("v_lshlrev_b32 v%d, 3, v%d" % (vT0, vQ32))
    e("v_lshl_add_u32 v%d, v%d, 9, v%d" % (vT1, vHf, vT0))
    e("v_add_u32 v%d, s%d, v%d" % (vA0, sT, vT1))
    e("v_add_u32 v%d, %d, v%d" % (vA1, SH, vT0))
    for t in range(2):
        e("ds_write_b64 v%d, %s offset:%d" % (vA0, vr(mreg[t], 2), t * 256))
    barrier()
    ML = FB
    for t in range(2):
        for k in range(8):
            e("ds_read_b64 %s, v%d offset:%d" % (vr(ML + (t * 8 + k) * 2, 2), vA1, k * 512 + t * 256))
        e("s_waitcnt lgkmcnt(0)")
    barrier()
    fac = [vS + 12, vS + 13]
    for t in range(2):
        mm = vS + 14 + t
        ms = [ML + (t * 8 + k) * 2 for k in range(8)]
        e("v_max3_f32 v%d, v%d, v%d, v%d" % (mm, ms[0], ms[1], ms[2]))
        e("v_max3_f32 v%d, v%d, v%d, v%d" % (mm, mm, ms[3], ms[4]))
        e("v_max3_f32 v%d, v%d, v%d, v%d" % (mm, mm, ms[5], ms[6]))
        e("v_max_f32 v%d, v%d, v%d" % (mm, mm, ms[7]))
        for k in range(8):
            e("v_sub_f32 v%d, v%d, v%d" % (ms[k], ms[k], mm))
            e("v_mul_f32 v%d, s%d, v%d" % (ms[k], sC, ms[k]))
            e("v_exp_f32 v%d, v%d" % (ms[k], ms[k]))
        e("s_nop 0")
        lg = vS + 16 + t
        e("v_mul_f32 v%d, v%d, v%d" % (lg, ms[0], ms[0] + 1))
        for k in range(1, 8):
            e("v_fmac_f32 v%d, v%d, v%d" % (lg, ms[k], ms[k] + 1))
        e("v_rcp_f32 v%d, v%d" % (lg, lg))
        e("v_sub_f32 v%d, v%d, v%d" % (fac[t], mreg[t], mm))
        e("v_mul_f32 v%d, s%d, v%d" % (fac[t], sC, fac[t]))
        e("v_exp_f32 v%d, v%d" % (fac[t], fac[t]))
        e("s_nop 0")
        e("v_mul_f32 v%d, v%d, v%d" % (fac[t], fac[t], lg))
    e("s_lshl_b32 s%d, s%d, 8" % (sT, sW))
    e("s_add_u32 s%d, s%d, %d" % (sT, sT, SH))
    e("v_and_b32 v%d, 15, v%d" % (vT0, vQ32))
    e("v_lshlrev_b32 v%d, 4, v%d" % (vT0, vT0))
    e("v_lshl_add_u32 v%d, v%d, 10, v%d" % (vT0, vQ32, vT0))
    e("v_lshl_add_u32 v%d, v%d, 3, v%d" % (vT1, vHf, vT0))
    e("v_add_u32 v%d, s%d, v%d" % (vA0, sT, vT1))
    for kt in range(4):
        for g in range(4):
            e("v_xor_b32 v%d, %d, v%d" % (vA1, (4 * kt + g) << 4, vA0))
            for t in range(2):
                a = accreg(kt, t, 4 * g)
                for i in range(4):
                    e("v_mul_f32 v%d, v%d, v%d" % (a + i, a + i, fac[t]))
                pk = vS + 18 + 2 * t
                e("v_cvt_pk_bf16_f32 v%d, v%d, v%d" % (pk, a, a + 1))
                e("v_cvt_pk_bf16_f32 v%d, v%d, v%d" % (pk + 1, a + 2, a + 3))
                e("ds_write_b64 v%d, %s offset:%d" % (vA1, vr(pk, 2), t * 32768))
    vPR = [vS + 0, vS + 1, vS + 2, vS + 3, vS + 4, vS + 5, vS + 6, vS + 7]
    e("v_and_b32 v%d, 15, v%d" % (vT0, vQ32))
    e("v_xor_b32 v%d, v%d, v%d" % (vT0, vHf, vT0))
    e("v_lshlrev_b32 v%d, 4, v%d" % (vT0, vT0))
    e("v_lshl_add_u32 v%d, v%d, 10, v%d" % (vT0, vQ32, vT0))
    e("v_add_u32 v%d, %d, v%d" % (vA2, SH, vT0))
    e("s_waitcnt lgkmcnt(0)")
    for k in range(8):
        e("v_xor_b32 v%d, %d, v%d" % (vPR[k], (2 * k) << 4, vA2))
    e("s_barrier")

    stamp()
    cm("==== phase 4 ====")
    def p4_reads(j, buf):
        base = FB + buf * 32
        off = st.chunks[cV[j]]['off']
        for ks in range(2):
            for D in range(2):
                for a in range(2):
                    r = base + (ks * 2 + D) * 4 + a * 2
                    e("ds_read_b64_tr_b16 %s, v%d offset:%d" % (vr(r, 2), vTR[D], off + (16 * ks + 4 * a) * 128))
            s = 2 * j + ks
            for t in range(2):
                r = base + 16 + (ks * 2 + t) * 4
                e("ds_read_b128 %s, v%d offset:%d" % (vr(r, 4), vPR[s & 7], (s >> 3) * 256 + t * 32768))
    def p4_mfma(j, buf, half):
        base = FB + buf * 32
        ks = half
        for D in range(2):
            for t in range(2):
                acc = ACC + (D * 2 + t) * 16
                c = "0" if (j == 0 and ks == 0) else vr(acc, 16)
                e("v_mfma_f32_32x32x16_bf16 %s, %s, %s, %s" % (vr(acc, 16), vr(base + (ks * 2 + D) * 4, 4), vr(base + 16 + (ks * 2 + t) * 4, 4), c))
                st.emit_one()
    run_phase(st, cV, p4_reads, p4_mfma)
    st.emit_all()
    stamp()
    e("s_barrier")
    e("s_nop 15")
    e("s_lshr_b32 s%d, s%d, 1" % (sT, sW))
    e("s_lshl_b32 s%d, s%d, 8" % (sT, sT))
    e("s_add_u32 s%d, s%d, %d" % (sT, sT, SH))
    e("s_and_b32 s%d, s%d, 1" % (sT2, sW))
    e("s_lshl_b32 s%d, s%d, 3" % (sT2, sT2))
    e("v_and_b32 v%d, 15, v%d" % (vT0, vQ32))
    e("v_xor_b32 v%d, v%d, v%d" % (vT0, vHf, vT0))
    e("v_xor_b32 v%d, s%d, v%d" % (vT0, sT2, vT0))
    e("v_lshlrev_b32 v%d, 4, v%d" % (vT0, vT0))
    e("v_lshl_add_u32 v%d, v%d, 9, v%d" % (vT0, vQ32, vT0))
    e("v_add_u32 v%d, s%d, v%d" % (vA0, sT, vT0))
    for D in range(2):
        for t in range(2):
            acc = ACC + (D * 2 + t) * 16
            for g in range(4):
                e("v_cvt_pk_bf16_f32 v%d, v%d, v%d" % (vS + 8, acc + 4 * g, acc + 4 * g + 1))
                e("v_cvt_pk_bf16_f32 v%d, v%d, v%d" % (vS + 9, acc + 4 * g + 2, acc + 4 * g + 3))
                e("v_xor_b32 v%d, %d, v%d" % (vA1, (4 * D + 2 * (g & 1)) << 4, vA0))
                e("ds_write_b64 v%d, %s offset:%d" % (vA1, vr(vS + 8, 2), t * 16384 + (g >> 1) * 8))
    barrier()
    e("v_and_b32 v%d, 15, v%d" % (vT0, vLane))
    e("v_lshrrev_b32 v%d, 4, v%d" % (vT1, vLane))
    e("v_xor_b32 v%d, v%d, v%d" % (vT1, vT1, vT0))
    e("v_lshlrev_b32 v%d, 4, v%d" % (vT1, vT1))
    e("v_lshl_add_u32 v%d, v%d, 9, v%d" % (vT1, vT0, vT1))
    e("v_add_u32 v%d, %d, v%d" % (vA0, SH, vT1))
    for T3 in range(4):
        e("v_xor_b32 v%d, %d, v%d" % (vA1, (4 * T3) << 4, vA0))
        for Th in range(2):
            T = Th * 4 + T3
            for qt in range(4):
                e("ds_read_b128 %s, v%d offset:%d" % (ar(128 + (T * 4 + qt) * 4, 4), vA1, qt * 8192 + Th * 256))
        e("s_waitcnt lgkmcnt(0)")

    stamp()
    cm("==== phase 5 ====")
    def p5_reads(T, buf):
        base = FB + buf * 32
        off = st.chunks[cWO[T]]['off']
        for ct in range(7):
            for a in range(2):
                e("ds_read_b64_tr_b16 %s, v%d offset:%d" % (vr(base + ct * 4 + a * 2, 2), vWOr, off + a * 16 * 224 + ct * 32))
    def p5_mfma(T, buf, cts):
        base = FB + buf * 32
        for ct in cts:
            for qt in range(4):
                acc = ACC + (ct * 4 + qt) * 4
                c = "0" if T == 0 else vr(acc, 4)
                e("v_mfma_f32_16x16x32_bf16 %s, %s, %s, %s" % (vr(acc, 4), vr(base + ct * 4, 4), ar(128 + (T * 4 + qt) * 4, 4), c))
            st.emit_one()
    run_phase(st, cWO, p5_reads, lambda T, buf, half: p5_mfma(T, buf, [0, 1, 2, 3] if half == 0 else [4, 5, 6]))
    st.emit_all()
    e("s_nop 15")
    stamp()
    e("v_lshlrev_b32 v%d, 4, v%d" % (vA0, vLane))
    for ti in range(28):
        acc = ACC + ti * 4
        if ti % 4 == 0:
            e("s_add_u32 s%d, s%d, %d" % (sT, sPb, ti * 1024))
        e("buffer_store_dwordx4 %s, v%d, s[%d:%d], s%d offen offset:%d%s" % (vr(acc, 4), vA0, sWS, sWS + 3, sT, (ti % 4) * 1024, STPOL))
    e("s_waitcnt vmcnt(0)")
    stamp()
    if STAMPS:
        i = nstamp[0]; nstamp[0] += 2
        e("s_mov_b64 s[%d:%d], s[92:93]" % (64 + 2 * i, 65 + 2 * i))
        e("s_memrealtime s[%d:%d]" % (66 + 2 * i, 67 + 2 * i))
        e("s_waitcnt lgkmcnt(0)")
    stamp_flush()
    lab("L_main_end")
    e("s_endpgm")

def gen_reduce():
    L.append(".p2align 8")
    L.append(".globl reduce_kernel")
    L.append(".type reduce_kernel,@function")
    lab("reduce_kernel")
    e("s_cmp_ge_u32 s2, 448")
    e("s_cbranch_scc1 L_red_end")
    if STAMPS:
        e("s_memrealtime s[32:33]")
        e("s_waitcnt lgkmcnt(0)")
    e("s_load_dwordx2 s[4:5], s[0:1], 40")
    e("s_load_dwordx2 s[6:7], s[0:1], 56")
    e("v_lshrrev_b32 v1, 6, v0")
    e("v_and_b32 v2, 63, v0")
    e("s_and_b32 s20, s2, 7")
    e("v_readfirstlane_b32 s21, v1")
    e("s_lshr_b32 s22, s2, 3")
    e("s_cmp_ge_u32 s22, 28")
    e("s_cselect_b32 s23, 1, 0")
    e("s_mul_i32 s24, s23, 28")
    e("s_sub_u32 s24, s22, s24")
    e("s_waitcnt lgkmcnt(0)")
    srd(8, 4, 8 * 128 * 448 * 2)
    srd(12, 6, 256 * 4 * 28 * 1024)
    e("s_lshl_b32 s25, s23, 3")
    e("s_add_u32 s25, s25, s20")
    e("s_lshl_b32 s25, s25, 2")
    e("s_add_u32 s25, s25, s21")
    e("s_mul_i32 s25, s25, 28")
    e("s_add_u32 s25, s25, s24")
    e("s_lshl_b32 s25, s25, 10")
    e("v_lshlrev_b32 v3, 4, v2")
    e("s_nop 4")
    for h in range(16):
        e("s_add_u32 s26, s25, %d" % (h * 16 * 4 * 28 * 1024))
        e("buffer_load_dwordx4 v[%d:%d], v3, s[12:15], s26 offen" % (8 + 4 * h, 11 + 4 * h))
    e("s_and_b32 s27, s24, 3")
    e("s_lshr_b32 s28, s24, 2")
    e("s_lshl_b32 s29, s20, 7")
    e("s_lshl_b32 s30, s23, 6")
    e("s_add_u32 s29, s29, s30")
    e("s_lshl_b32 s30, s27, 4")
    e("s_add_u32 s29, s29, s30")
    e("s_mul_i32 s29, s29, 896")
    e("s_mul_i32 s30, s21, 224")
    e("s_add_u32 s29, s29, s30")
    e("s_lshl_b32 s30, s28, 5")
    e("s_add_u32 s29, s29, s30")
    e("v_and_b32 v4, 15, v2")
    e("v_mul_u32_u24 v4, 896, v4")
    e("v_lshrrev_b32 v5, 4, v2")
    e("v_lshl_add_u32 v4, v5, 3, v4")
    for h in range(1, 16):
        e("s_waitcnt vmcnt(%d)" % (15 - h))
        for i in range(4):
            e("v_add_f32 v%d, v%d, v%d" % (8 + i, 8 + i, 8 + 4 * h + i))
    e("v_cvt_pk_bf16_f32 v8, v8, v9")
    e("v_cvt_pk_bf16_f32 v9, v10, v11")
    e("buffer_store_dwordx2 v[8:9], v4, s[8:11], s29 offen")
    e("s_waitcnt vmcnt(0)")
    if STAMPS:
        e("s_memrealtime s[34:35]")
        e("s_waitcnt lgkmcnt(0)")
        e("s_mov_b32 s14, 0x10000000")
        e("s_lshl_b32 s26, s2, 2")
        e("s_add_u32 s26, s26, s21")
        e("s_lshl_b32 s26, s26, 4")
        e("s_add_u32 s26, s26, %d" % (129 << 20))
        e("v_mov_b32 v8, s32")
        e("v_mov_b32 v9, s33")
        e("v_mov_b32 v10, s34")
        e("v_mov_b32 v11, s35")
        e("v_mov_b32 v3, 0")
        e("buffer_store_dwordx4 v[8:11], v3, s[12:15], s26 offen")
    lab("L_red_end")
    e("s_endpgm")

HEADER = """; Kernarg layout for this problem (64 bytes, ptrs only, base s[0:1]):
;   offset   0: d_in[0] x  shape=(8, 128, 448) dtype=bfloat16
;   offset   8: d_in[1] k_cache  shape=(8, 16, 512, 256) dtype=bfloat16
;   offset  16: d_in[2] v_cache  shape=(8, 16, 512, 256) dtype=bfloat16
;   offset  24: d_in[3] wq  shape=(448, 4096) dtype=bfloat16
;   offset  32: d_in[4] wo  shape=(4096, 448) dtype=bfloat16
;   offset  40: d_out     shape=(8, 128, 448) dtype=bfloat16
;   offset  48: d_debug   256 bytes
;   offset  56: d_ws      268435456 bytes workspace
; generated by gen.py
; @launch kernel=%s_kernel grid=(256,1,1) block=(256,1,1) lds=%d
; @launch kernel=reduce_kernel grid=(448,1,1) block=(256,1,1) lds=0
.amdgcn_target "amdgcn-amd-amdhsa--gfx950"
.text
.globl %s_kernel
.p2align 8
.type %s_kernel,@function
""" % (NAME, LDS_TOTAL, NAME, NAME)

FOOTER = """.section .rodata,"a"
.p2align 6
.amdhsa_kernel %s_kernel
  .amdhsa_next_free_vgpr 512
  .amdhsa_next_free_sgpr 102
  .amdhsa_accum_offset 256
  .amdhsa_group_segment_fixed_size 0
  .amdhsa_kernarg_size 64
  .amdhsa_user_sgpr_count 2
  .amdhsa_user_sgpr_kernarg_segment_ptr 1
  .amdhsa_system_sgpr_workgroup_id_x 1
.end_amdhsa_kernel
.p2align 6
.amdhsa_kernel reduce_kernel
  .amdhsa_next_free_vgpr 80
  .amdhsa_next_free_sgpr 40
  .amdhsa_accum_offset 80
  .amdhsa_group_segment_fixed_size 0
  .amdhsa_kernarg_size 64
  .amdhsa_user_sgpr_count 2
  .amdhsa_user_sgpr_kernarg_segment_ptr 1
  .amdhsa_system_sgpr_workgroup_id_x 1
.end_amdhsa_kernel
""" % NAME

gen_main()
gen_reduce()
with open(OUT, "w") as f:
    f.write(HEADER + "\n".join(L) + "\n" + FOOTER)
print("wrote", OUT, len(L), "lines")
```

```python
import struct, sys, os
KVPOL = os.environ.get("KVPOL", " nt")
STPOL = os.environ.get("STPOL", "")

OUT = sys.argv[1] if len(sys.argv) > 1 else "standalone__mha_block_cached__near_ridge.s"
NAME = "standalone__mha_block_cached__near_ridge"

L = []
def e(s): L.append("    " + s)
def lab(s): L.append(s + ":")
def cm(s): L.append("    ; " + s)

def f32bits(x): return struct.unpack("<I", struct.pack("<f", x))[0]

RING = 24576
SH = 4 * RING
LDS_TOTAL = 163840

sX, sK, sV, sWQ, sWO, sWS = 20, 24, 28, 32, 36, 40
sW = 44
sRing = 45
sXb, sWQb, sKb, sVb, sWOb, sPb = 46, 47, 48, 49, 50, 51
sT = 52
sC = 53
sB, sH, sHalf = 54, 55, 56
sT2 = 57
sMask = 58
sKc = [96, 97, 98, 99]

vLane = 1
vQ32 = 2
vHf = 3
vT0, vT1, vT2, vT3 = 4, 5, 6, 7
vXK = [8, 9, 10, 11]
vKA = [12, 13, 14, 15]
vTR = [16, 17]
vWOr = 18
vDX = [19, 20]
vDWQ = 21
vDK = [22, 23]
vDV = 24
vDWO = [25, 26, 27, 28, 29, 30, 31]
vA0, vA1, vA2, vA3, vA4, vA5, vA6, vA7 = 32, 33, 34, 35, 36, 37, 38, 39
vS = 40
FB = 64
ACC = 128

def vr(b, n): return "v[%d:%d]" % (b, b + n - 1)
def ar(b, n): return "a[%d:%d]" % (b, b + n - 1)

class Stream:
    def __init__(self):
        self.chunks = []
        self.vm_issued = 0
        self.last_instr = {}
        self.pending = []
        self.next_chunk = 0
        self.pos = 0
    def add(self, kind, idx, size):
        if self.pos + size > RING:
            self.pos = 0
        self.chunks.append(dict(kind=kind, idx=idx, size=size, off=self.pos))
        self.pos += size
    def dep(self, c):
        a = self.chunks[c]
        for p in range(c - 1, -1, -1):
            b = self.chunks[p]
            if a['off'] < b['off'] + b['size'] and b['off'] < a['off'] + a['size']:
                return p
        return -1
    def release(self, consumed):
        while self.next_chunk < len(self.chunks) and self.dep(self.next_chunk) <= consumed:
            c = self.next_chunk
            n = self.chunks[c]['size'] // 1024
            for i in range(n):
                self.pending.append((c, i))
            self.next_chunk += 1
    def emit_one(self):
        if not self.pending:
            return False
        c, n = self.pending.pop(0)
        ch = self.chunks[c]
        emit_dma(ch['kind'], ch['idx'], n, ch['off'] + n * 1024)
        self.vm_issued += 1
        self.last_instr[c] = self.vm_issued
        return True
    def emit_all(self):
        while self.emit_one():
            pass
    def wait(self, c):
        while any(p[0] <= c for p in self.pending):
            self.emit_one()
        n = self.vm_issued - self.last_instr[c]
        e("s_waitcnt vmcnt(%d)" % n)

def emit_dma(kind, idx, n, ringoff):
    e("s_add_u32 m0, s%d, %d" % (sRing, ringoff))
    if kind == 'wq':
        e("s_add_u32 s%d, s%d, %d" % (sT, sWQb, (32 * idx + 8 * n) * 8192))
        e("buffer_load_dwordx4 v%d, s[%d:%d], s%d offen lds" % (vDWQ, sWQ, sWQ + 3, sT))
    elif kind == 'k':
        kt, db = idx
        e("s_add_u32 s%d, s%d, %d" % (sT, sKc[db], (32 * kt + 8 * n) * 512))
        e("buffer_load_dwordx4 v%d, s[%d:%d], s%d offen%s lds" % (vDK[n & 1], sK, sK + 3, sT, KVPOL))
    elif kind == 'v':
        e("s_add_u32 s%d, s%d, %d" % (sT, sVb, (32 * idx + 8 * n) * 512))
        e("buffer_load_dwordx4 v%d, s[%d:%d], s%d offen%s lds" % (vDV, sV, sV + 3, sT, KVPOL))
    elif kind == 'wo':
        e("s_add_u32 s%d, s%d, %d" % (sT, sWOb, (32 * idx) * 896))
        e("buffer_load_dwordx4 v%d, s[%d:%d], s%d offen lds" % (vDWO[n], sWO, sWO + 3, sT))
    else:
        raise ValueError(kind)

def srd(s, lo, nbytes):
    e("s_mov_b32 s%d, s%d" % (s, lo))
    e("s_and_b32 s%d, s%d, 0xffff" % (s + 1, lo + 1))
    e("s_mov_b32 s%d, %d" % (s + 2, nbytes))
    e("s_mov_b32 s%d, 0x00020000" % (s + 3))

import os
STAMPS = bool(os.environ.get("GEN_STAMPS"))
nstamp = [0]
def stamp():
    if not STAMPS: return
    i = nstamp[0]; nstamp[0] += 1
    e("s_memtime s[%d:%d]" % (64 + 2 * i, 65 + 2 * i))
    e("s_waitcnt lgkmcnt(0)")
def stamp_flush():
    if not STAMPS: return
    e("s_mov_b32 s%d, 0x10000000" % (sWS + 2))
    e("s_lshl_b32 s%d, s2, 2" % sT)
    e("s_add_u32 s%d, s%d, s%d" % (sT, sT, sW))
    e("s_lshl_b32 s%d, s%d, 8" % (sT, sT))
    e("s_add_u32 s%d, s%d, %d" % (sT, sT, 128 << 20))
    e("v_mov_b32 v%d, 0" % vA1)
    for i in range(nstamp[0]):
        e("v_mov_b32 v%d, s%d" % (vS, 64 + 2 * i))
        e("v_mov_b32 v%d, s%d" % (vS + 1, 65 + 2 * i))
        e("buffer_store_dwordx2 %s, v%d, s[%d:%d], s%d offen offset:%d" % (vr(vS, 2), vA1, sWS, sWS + 3, sT, 8 * i))
        e("s_nop 2")

def barrier():
    e("s_waitcnt lgkmcnt(0)")
    e("s_barrier")

def gen_main():
    lab(NAME + "_kernel")
    e("s_cmp_ge_u32 s2, 256")
    e("s_cbranch_scc1 L_main_end")
    stamp()
    if STAMPS:
        e("s_memrealtime s[92:93]")
        e("s_waitcnt lgkmcnt(0)")
    e("s_load_dwordx8 s[4:11], s[0:1], 0")
    e("s_load_dwordx8 s[12:19], s[0:1], 32")
    e("v_lshrrev_b32 v%d, 6, v0" % vT0)
    e("v_and_b32 v%d, 63, v0" % vLane)
    e("s_lshr_b32 s%d, s2, 5" % sB)
    e("v_readfirstlane_b32 s%d, v%d" % (sW, vT0))
    e("s_and_b32 s%d, s2, 7" % sH)
    e("s_lshl_b32 s%d, s%d, 1" % (sH, sH))
    e("s_lshr_b32 s%d, s2, 3" % sHalf)
    e("s_and_b32 s%d, s%d, 1" % (sT, sHalf))
    e("s_add_u32 s%d, s%d, s%d" % (sH, sH, sT))
    e("s_lshr_b32 s%d, s2, 4" % sHalf)
    e("s_and_b32 s%d, s%d, 1" % (sHalf, sHalf))
    e("s_mov_b32 s%d, 0x%08x" % (sC, f32bits(1.4426950408889634 / 16.0)))
    e("v_and_b32 v%d, 31, v%d" % (vQ32, vLane))
    e("v_lshrrev_b32 v%d, 5, v%d" % (vHf, vLane))
    e("s_mul_i32 s%d, s%d, %d" % (sRing, sW, RING))
    e("s_waitcnt lgkmcnt(0)")
    srd(sX, 4, 8 * 128 * 448 * 2)
    srd(sK, 6, 8 * 16 * 512 * 256 * 2)
    srd(sV, 8, 8 * 16 * 512 * 256 * 2)
    srd(sWQ, 10, 448 * 4096 * 2)
    srd(sWO, 12, 4096 * 448 * 2)
    srd(sWS, 18, 256 * 4 * 28 * 1024)
    if os.environ.get("NOSHARE"):
        e("s_cmp_eq_u32 s%d, 1" % sHalf)
        for i in range(2):
            e("s_cselect_b32 s60, s%d, s%d" % (sV + i, sK + i))
            e("s_cselect_b32 s61, s%d, s%d" % (sK + i, sV + i))
            e("s_mov_b32 s%d, s60" % (sK + i))
            e("s_mov_b32 s%d, s61" % (sV + i))
    e("s_lshl_b32 s%d, s%d, 1" % (sT, sB))
    e("s_add_u32 s%d, s%d, s%d" % (sT, sT, sHalf))
    e("s_mul_i32 s%d, s%d, %d" % (sXb, sT, 64 * 896))
    e("s_lshl_b32 s%d, s%d, 9" % (sWQb, sH))
    e("s_lshl_b32 s%d, s%d, 7" % (sT, sW))
    e("s_add_u32 s%d, s%d, s%d" % (sWQb, sWQb, sT))
    e("s_lshl_b32 s%d, s%d, 4" % (sT, sB))
    e("s_add_u32 s%d, s%d, s%d" % (sT, sT, sH))
    e("s_lshl_b32 s%d, s%d, 18" % (sT, sT))
    e("s_lshl_b32 s%d, s%d, 16" % (sT2, sW))
    e("s_add_u32 s%d, s%d, s%d" % (sKb, sT, sT2))
    e("s_lshl_b32 s%d, s%d, 7" % (sT2, sW))
    e("s_add_u32 s%d, s%d, s%d" % (sVb, sT, sT2))
    for db in range(4):
        e("s_add_u32 s%d, s%d, %d" % (sT2, sW, db))
        e("s_and_b32 s%d, s%d, 3" % (sT2, sT2))
        e("s_lshl_b32 s%d, s%d, 7" % (sT2, sT2))
        e("s_add_u32 s%d, s%d, s%d" % (sKc[db], sKb, sT2))
    e("s_mul_i32 s%d, s%d, %d" % (sWOb, sH, 256 * 896))
    e("s_mul_i32 s%d, s%d, 224" % (sT, sW))
    e("s_add_u32 s%d, s%d, s%d" % (sWOb, sWOb, sT))
    e("s_lshl_b32 s%d, s2, 2" % sT)
    e("s_add_u32 s%d, s%d, s%d" % (sT, sT, sW))
    e("s_mul_i32 s%d, s%d, %d" % (sPb, sT, 28 * 1024))

    cm("DMA voffsets")
    r8, p8 = vT0, vT1
    e("v_lshrrev_b32 v%d, 3, v%d" % (r8, vLane))
    e("v_and_b32 v%d, 7, v%d" % (p8, vLane))
    e("v_lshrrev_b32 v%d, 1, v%d" % (vT2, r8))
    e("v_xor_b32 v%d, v%d, v%d" % (vT3, p8, vT2))
    e("v_lshlrev_b32 v%d, 4, v%d" % (vA0, vT3))
    e("v_xor_b32 v%d, 64, v%d" % (vA1, vA0))
    e("v_mul_u32_u24 v%d, 896, v%d" % (vA2, r8))
    e("v_add_u32 v%d, v%d, v%d" % (vDX[0], vA2, vA0))
    e("v_add_u32 v%d, v%d, v%d" % (vDX[1], vA2, vA1))
    e("v_lshlrev_b32 v%d, 9, v%d" % (vA2, r8))
    e("v_add_u32 v%d, v%d, v%d" % (vDK[0], vA2, vA0))
    e("v_add_u32 v%d, v%d, v%d" % (vDK[1], vA2, vA1))
    e("v_and_b32 v%d, 1, v%d" % (vT3, vT2))
    e("v_lshlrev_b32 v%d, 2, v%d" % (vT3, vT3))
    e("v_xor_b32 v%d, v%d, v%d" % (vT3, p8, vT3))
    e("v_lshlrev_b32 v%d, 4, v%d" % (vT3, vT3))
    e("v_add_u32 v%d, v%d, v%d" % (vDV, vA2, vT3))
    e("v_lshlrev_b32 v%d, 13, v%d" % (vA2, r8))
    e("v_add_u32 v%d, v%d, v%d" % (vDWQ, vA2, vT3))
    for n in range(7):
        e("v_add_u32 v%d, %d, v%d" % (vT0, 64 * n, vLane))
        e("v_mul_u32_u24 v%d, 4682, v%d" % (vT1, vT0))
        e("v_lshrrev_b32 v%d, 16, v%d" % (vT1, vT1))
        e("v_mul_u32_u24 v%d, 14, v%d" % (vT2, vT1))
        e("v_sub_u32 v%d, v%d, v%d" % (vT2, vT0, vT2))
        e("v_mul_u32_u24 v%d, 896, v%d" % (vT1, vT1))
        e("v_lshlrev_b32 v%d, 4, v%d" % (vT2, vT2))
        e("v_add_u32 v%d, v%d, v%d" % (vDWO[n], vT1, vT2))
    e("s_nop 4")

    st = Stream()
    for j in range(14): st.add('wq', j, 4096)
    for kt in range(4):
        for db in range(4): st.add('k', (kt, db), 4096)
    for j in range(16): st.add('v', j, 4096)
    for t in range(8): st.add('wo', t, 7168)
    C_WQ, C_K, C_V, C_WO = 0, 14, 30, 46

    cm("x tile DMA")
    e("s_mul_i32 s%d, s%d, 14" % (sT2, sW))
    for k in range(14):
        e("s_add_u32 s60, s%d, %d" % (sT2, k))
        e("s_lshr_b32 s61, s60, 3")
        e("s_and_b32 s62, s60, 7")
        e("s_lshl_b32 s63, s60, 10")
        e("s_add_u32 m0, s63, %d" % SH)
        e("s_mul_i32 s63, s62, %d" % (8 * 896))
        e("s_lshl_b32 s61, s61, 7")
        e("s_add_u32 s63, s63, s61")
        e("s_add_u32 s63, s63, s%d" % sXb)
        e("buffer_load_dwordx4 v%d, s[%d:%d], s63 offen lds" % (vDX[k & 1], sX, sX + 3))
        st.vm_issued += 1
    x_last = st.vm_issued
    st.release(-1)
    st.emit_all()

    cm("LDS read address regs")
    e("v_lshrrev_b32 v%d, 1, v%d" % (vT0, vQ32))
    e("v_and_b32 v%d, 7, v%d" % (vT0, vT0))
    e("v_lshlrev_b32 v%d, 7, v%d" % (vT1, vQ32))
    for k in range(4):
        e("v_add_u32 v%d, %d, v%d" % (vT2, 2 * k, vHf))
        e("v_xor_b32 v%d, v%d, v%d" % (vT2, vT2, vT0))
        e("v_lshl_add_u32 v%d, v%d, 4, v%d" % (vT2, vT2, vT1))
        e("v_add_u32 v%d, %d, v%d" % (vXK[k], SH, vT2))
        e("v_add_u32 v%d, s%d, v%d" % (vKA[k], sRing, vT2))
    e("v_lshrrev_b32 v%d, 4, v%d" % (vT0, vLane))
    e("v_and_b32 v%d, 1, v%d" % (vT0, vT0))
    e("v_and_b32 v%d, 15, v%d" % (vT1, vLane))
    e("v_lshrrev_b32 v%d, 2, v%d" % (vT2, vT1))
    e("v_and_b32 v%d, 3, v%d" % (vT3, vT1))
    e("v_lshl_add_u32 v%d, v%d, 3, v%d" % (vA0, vHf, vT2))
    e("v_lshlrev_b32 v%d, 7, v%d" % (vA0, vA0))
    e("v_lshrrev_b32 v%d, 1, v%d" % (vA1, vT3))
    e("v_lshl_add_u32 v%d, v%d, 1, v%d" % (vA1, vT0, vA1))
    e("v_lshrrev_b32 v%d, 1, v%d" % (vA2, vT2))
    e("v_lshlrev_b32 v%d, 2, v%d" % (vA2, vA2))
    e("v_xor_b32 v%d, v%d, v%d" % (vA1, vA1, vA2))
    e("v_lshl_add_u32 v%d, v%d, 4, v%d" % (vA0, vA1, vA0))
    e("v_and_b32 v%d, 1, v%d" % (vA1, vT3))
    e("v_lshl_add_u32 v%d, v%d, 3, v%d" % (vA0, vA1, vA0))
    e("v_add_u32 v%d, s%d, v%d" % (vTR[0], sRing, vA0))
    e("v_xor_b32 v%d, 64, v%d" % (vTR[1], vTR[0]))
    e("v_lshrrev_b32 v%d, 4, v%d" % (vA0, vLane))
    e("v_lshl_add_u32 v%d, v%d, 2, v%d" % (vA0, vA0, vT2))
    e("v_mul_u32_u24 v%d, 224, v%d" % (vA0, vA0))
    e("v_lshl_add_u32 v%d, v%d, 3, v%d" % (vA0, vT3, vA0))
    e("v_add_u32 v%d, s%d, v%d" % (vWOr, sRing, vA0))

    e("s_waitcnt vmcnt(%d)" % (st.vm_issued - x_last))
    e("s_barrier")

    stamp()
    cm("==== phase 1: Q^T = wq^T x^T ====")
    def p1_reads(j, buf):
        base = FB + buf * 32
        off = st.chunks[C_WQ + j]['off']
        for ks in range(2):
            for D in range(2):
                for a in range(2):
                    r = base + (ks * 2 + D) * 4 + a * 2
                    e("ds_read_b64_tr_b16 %s, v%d offset:%d" % (vr(r, 2), vTR[D], off + (16 * ks + 4 * a) * 128))
            s = 2 * j + ks
            for t in range(2):
                r = base + 16 + (ks * 2 + t) * 4
                e("ds_read_b128 %s, v%d offset:%d" % (vr(r, 4), vXK[s & 3], (s >> 2) * 8192 + t * 4096))
    def p1_mfma(j, buf, half):
        base = FB + buf * 32
        ks = half
        for D in range(2):
            for t in range(2):
                acc = ACC + (D * 2 + t) * 16
                c = "0" if (j == 0 and ks == 0) else vr(acc, 16)
                e("v_mfma_f32_32x32x16_bf16 %s, %s, %s, %s" % (vr(acc, 16), vr(base + (ks * 2 + D) * 4, 4), vr(base + 16 + (ks * 2 + t) * 4, 4), c))
                if (D * 2 + t) % 2 == 1:
                    st.emit_one()
    st.wait(C_WQ + 0)
    p1_reads(0, 0)
    for j in range(14):
        e("s_waitcnt lgkmcnt(0)")
        st.release(C_WQ + j)
        p1_mfma(j, j & 1, 0)
        if j + 1 < 14:
            st.wait(C_WQ + j + 1)
            p1_reads(j + 1, (j + 1) & 1)
        p1_mfma(j, j & 1, 1)
    st.emit_all()
    stamp()
    e("s_barrier")
    e("s_nop 15")
    e("s_lshr_b32 s%d, s%d, 1" % (sT, sW))
    e("s_lshl_b32 s%d, s%d, 8" % (sT, sT))
    e("s_add_u32 s%d, s%d, %d" % (sT, sT, SH))
    e("s_and_b32 s%d, s%d, 1" % (sT2, sW))
    e("s_lshl_b32 s%d, s%d, 3" % (sT2, sT2))
    e("v_and_b32 v%d, 15, v%d" % (vT0, vQ32))
    e("v_xor_b32 v%d, s%d, v%d" % (vT0, sT2, vT0))
    e("v_lshlrev_b32 v%d, 4, v%d" % (vT0, vT0))
    e("v_lshl_add_u32 v%d, v%d, 9, v%d" % (vT0, vQ32, vT0))
    e("v_lshl_add_u32 v%d, v%d, 3, v%d" % (vT0, vHf, vT0))
    e("v_add_u32 v%d, s%d, v%d" % (vA0, sT, vT0))
    for D in range(2):
        for t in range(2):
            acc = ACC + (D * 2 + t) * 16
            for g in range(4):
                e("v_cvt_pk_bf16_f32 v%d, v%d, v%d" % (vS + 0, acc + 4 * g, acc + 4 * g + 1))
                e("v_cvt_pk_bf16_f32 v%d, v%d, v%d" % (vS + 1, acc + 4 * g + 2, acc + 4 * g + 3))
                e("v_xor_b32 v%d, %d, v%d" % (vA1, (4 * D + g) << 4, vA0))
                e("ds_write_b64 v%d, %s offset:%d" % (vA1, vr(vS, 2), t * 16384))
    barrier()
    e("v_and_b32 v%d, 15, v%d" % (vT0, vQ32))
    e("v_xor_b32 v%d, v%d, v%d" % (vT0, vHf, vT0))
    e("v_lshlrev_b32 v%d, 4, v%d" % (vT0, vT0))
    e("v_lshl_add_u32 v%d, v%d, 9, v%d" % (vT0, vQ32, vT0))
    e("v_add_u32 v%d, %d, v%d" % (vA0, SH, vT0))
    for db in range(4):
        e("s_add_u32 s%d, s%d, %d" % (sT2, sW, db))
        e("s_and_b32 s%d, s%d, 3" % (sT2, sT2))
        e("s_lshl_b32 s%d, s%d, 7" % (sT2, sT2))
        e("v_xor_b32 v%d, s%d, v%d" % (vA1, sT2, vA0))
        for k in range(4):
            sidx = 4 * db + k
            e("v_xor_b32 v%d, %d, v%d" % (vA2, k << 5, vA1))
            for t in range(2):
                e("ds_read_b128 %s, v%d offset:%d" % (ar((sidx * 2 + t) * 4, 4), vA2, t * 16384))
        e("s_waitcnt lgkmcnt(0)")

    stamp()
    cm("==== phase 2 ====")
    def p2_reads(c, buf):
        base = FB + buf * 32
        off = st.chunks[C_K + c]['off']
        for k in range(4):
            e("ds_read_b128 %s, v%d offset:%d" % (vr(base + 4 * k, 4), vKA[k], off))
    def p2_mfma(c, buf, half):
        base = FB + buf * 32
        kt, db = divmod(c, 4)
        for k in range(2 * half, 2 * half + 2):
            s = 4 * db + k
            for t in range(2):
                acc = ACC + (kt * 2 + t) * 16
                cc = "0" if s == 0 else vr(acc, 16)
                e("v_mfma_f32_32x32x16_bf16 %s, %s, %s, %s" % (vr(acc, 16), vr(base + 4 * k, 4), ar((s * 2 + t) * 4, 4), cc))
            st.emit_one()
    st.wait(C_K + 0)
    p2_reads(0, 0)
    for c in range(16):
        e("s_waitcnt lgkmcnt(0)")
        st.release(C_K + c)
        p2_mfma(c, c & 1, 0)
        if c + 1 < 16:
            st.wait(C_K + c + 1)
            p2_reads(c + 1, (c + 1) & 1)
        p2_mfma(c, c & 1, 1)
    st.emit_all()
    e("s_nop 15")

    stamp()
    cm("==== phase 3: softmax ====")
    e("s_mov_b32 s%d, 0xffff0000" % sMask)
    vM = [vS + 0, vS + 1]
    def accreg(kt, t, i): return ACC + (kt * 2 + t) * 16 + i
    for t in range(2):
        for kt in range(4):
            for i in range(0, 16, 2):
                a0, a1 = accreg(kt, t, i), accreg(kt, t, i + 1)
                e("v_cvt_pk_bf16_f32 v%d, v%d, v%d" % (a1, a0, a1))
                e("v_lshlrev_b32 v%d, 16, v%d" % (a0, a1))
                e("v_and_b32 v%d, s%d, v%d" % (a1, sMask, a1))
    mreg = [vS + 0, vS + 2]
    lreg = [vS + 1, vS + 3]
    tmpm = [vS + 4, vS + 5]
    for t in range(2):
        vals = [accreg(kt, t, i) for kt in range(4) for i in range(16)]
        e("v_max_f32 v%d, v%d, v%d" % (mreg[t], vals[0], vals[1]))
        e("v_max_f32 v%d, v%d, v%d" % (tmpm[t], vals[2], vals[3]))
    for idx in range(4, 64, 4):
        for t in range(2):
            vals = [accreg(kt, t, i) for kt in range(4) for i in range(16)]
            e("v_max3_f32 v%d, v%d, v%d, v%d" % (mreg[t], mreg[t], vals[idx], vals[idx + 1]))
            e("v_max3_f32 v%d, v%d, v%d, v%d" % (tmpm[t], tmpm[t], vals[idx + 2], vals[idx + 3]))
    for t in range(2):
        e("v_max_f32 v%d, v%d, v%d" % (mreg[t], mreg[t], tmpm[t]))
    nmc = [vS + 6, vS + 7]
    for t in range(2):
        e("v_mul_f32 v%d, s%d, v%d" % (nmc[t], sC, mreg[t]))
    for kt in range(4):
        for i in range(16):
            for t in range(2):
                a = accreg(kt, t, i)
                e("v_fma_f32 v%d, v%d, s%d, -v%d" % (a, a, sC, nmc[t]))
            for t in range(2):
                a = accreg(kt, t, i)
                e("v_exp_f32 v%d, v%d" % (a, a))
    e("s_nop 0")
    sp = [[vS + 8, vS + 9], [vS + 10, vS + 11]]
    for t in range(2):
        vals = [accreg(kt, t, i) for kt in range(4) for i in range(16)]
        e("v_add_f32 v%d, v%d, v%d" % (sp[t][0], vals[0], vals[1]))
        e("v_add_f32 v%d, v%d, v%d" % (sp[t][1], vals[2], vals[3]))
    for idx in range(4, 64, 2):
        for t in range(2):
            vals = [accreg(kt, t, i) for kt in range(4) for i in range(16)]
            e("v_add_f32 v%d, v%d, v%d" % (sp[t][0], sp[t][0], vals[idx]))
            e("v_add_f32 v%d, v%d, v%d" % (sp[t][1], sp[t][1], vals[idx + 1]))
    for t in range(2):
        e("v_add_f32 v%d, v%d, v%d" % (lreg[t], sp[t][0], sp[t][1]))
    e("s_lshl_b32 s%d, s%d, 10" % (sT, sW))
    e("s_add_u32 s%d, s%d, %d" % (sT, sT, SH))
    e("v_lshlrev_b32 v%d, 3, v%d" % (vT0, vQ32))
    e("v_lshl_add_u32 v%d, v%d, 9, v%d" % (vT1, vHf, vT0))
    e("v_add_u32 v%d, s%d, v%d" % (vA0, sT, vT1))
    e("v_add_u32 v%d, %d, v%d" % (vA1, SH, vT0))
    for t in range(2):
        e("ds_write_b64 v%d, %s offset:%d" % (vA0, vr(mreg[t], 2), t * 256))
    barrier()
    ML = FB
    for t in range(2):
        for k in range(8):
            e("ds_read_b64 %s, v%d offset:%d" % (vr(ML + (t * 8 + k) * 2, 2), vA1, k * 512 + t * 256))
        e("s_waitcnt lgkmcnt(0)")
    barrier()
    fac = [vS + 12, vS + 13]
    for t in range(2):
        mm = vS + 14 + t
        ms = [ML + (t * 8 + k) * 2 for k in range(8)]
        e("v_max3_f32 v%d, v%d, v%d, v%d" % (mm, ms[0], ms[1], ms[2]))
        e("v_max3_f32 v%d, v%d, v%d, v%d" % (mm, mm, ms[3], ms[4]))
        e("v_max3_f32 v%d, v%d, v%d, v%d" % (mm, mm, ms[5], ms[6]))
        e("v_max_f32 v%d, v%d, v%d" % (mm, mm, ms[7]))
        for k in range(8):
            e("v_sub_f32 v%d, v%d, v%d" % (ms[k], ms[k], mm))
            e("v_mul_f32 v%d, s%d, v%d" % (ms[k], sC, ms[k]))
            e("v_exp_f32 v%d, v%d" % (ms[k], ms[k]))
        e("s_nop 0")
        lg = vS + 16 + t
        e("v_mul_f32 v%d, v%d, v%d" % (lg, ms[0], ms[0] + 1))
        for k in range(1, 8):
            e("v_fmac_f32 v%d, v%d, v%d" % (lg, ms[k], ms[k] + 1))
        e("v_rcp_f32 v%d, v%d" % (lg, lg))
        e("v_sub_f32 v%d, v%d, v%d" % (fac[t], mreg[t], mm))
        e("v_mul_f32 v%d, s%d, v%d" % (fac[t], sC, fac[t]))
        e("v_exp_f32 v%d, v%d" % (fac[t], fac[t]))
        e("s_nop 0")
        e("v_mul_f32 v%d, v%d, v%d" % (fac[t], fac[t], lg))
    e("s_lshl_b32 s%d, s%d, 8" % (sT, sW))
    e("s_add_u32 s%d, s%d, %d" % (sT, sT, SH))
    e("v_and_b32 v%d, 15, v%d" % (vT0, vQ32))
    e("v_lshlrev_b32 v%d, 4, v%d" % (vT0, vT0))
    e("v_lshl_add_u32 v%d, v%d, 10, v%d" % (vT0, vQ32, vT0))
    e("v_lshl_add_u32 v%d, v%d, 3, v%d" % (vT1, vHf, vT0))
    e("v_add_u32 v%d, s%d, v%d" % (vA0, sT, vT1))
    for kt in range(4):
        for g in range(4):
            e("v_xor_b32 v%d, %d, v%d" % (vA1, (4 * kt + g) << 4, vA0))
            for t in range(2):
                a = accreg(kt, t, 4 * g)
                for i in range(4):
                    e("v_mul_f32 v%d, v%d, v%d" % (a + i, a + i, fac[t]))
                pk = vS + 18 + 2 * t
                e("v_cvt_pk_bf16_f32 v%d, v%d, v%d" % (pk, a, a + 1))
                e("v_cvt_pk_bf16_f32 v%d, v%d, v%d" % (pk + 1, a + 2, a + 3))
                e("ds_write_b64 v%d, %s offset:%d" % (vA1, vr(pk, 2), t * 32768))
    vPR = [vS + 0, vS + 1, vS + 2, vS + 3, vS + 4, vS + 5, vS + 6, vS + 7]
    e("v_and_b32 v%d, 15, v%d" % (vT0, vQ32))
    e("v_xor_b32 v%d, v%d, v%d" % (vT0, vHf, vT0))
    e("v_lshlrev_b32 v%d, 4, v%d" % (vT0, vT0))
    e("v_lshl_add_u32 v%d, v%d, 10, v%d" % (vT0, vQ32, vT0))
    e("v_add_u32 v%d, %d, v%d" % (vA2, SH, vT0))
    e("s_waitcnt lgkmcnt(0)")
    for k in range(8):
        e("v_xor_b32 v%d, %d, v%d" % (vPR[k], (2 * k) << 4, vA2))
    e("s_barrier")

    stamp()
    cm("==== phase 4 ====")
    def p4_reads(j, buf):
        base = FB + buf * 32
        off = st.chunks[C_V + j]['off']
        for ks in range(2):
            for D in range(2):
                for a in range(2):
                    r = base + (ks * 2 + D) * 4 + a * 2
                    e("ds_read_b64_tr_b16 %s, v%d offset:%d" % (vr(r, 2), vTR[D], off + (16 * ks + 4 * a) * 128))
            s = 2 * j + ks
            for t in range(2):
                r = base + 16 + (ks * 2 + t) * 4
                e("ds_read_b128 %s, v%d offset:%d" % (vr(r, 4), vPR[s & 7], (s >> 3) * 256 + t * 32768))
    def p4_mfma(j, buf, half):
        base = FB + buf * 32
        ks = half
        for D in range(2):
            for t in range(2):
                acc = ACC + (D * 2 + t) * 16
                c = "0" if (j == 0 and ks == 0) else vr(acc, 16)
                e("v_mfma_f32_32x32x16_bf16 %s, %s, %s, %s" % (vr(acc, 16), vr(base + (ks * 2 + D) * 4, 4), vr(base + 16 + (ks * 2 + t) * 4, 4), c))
                if (D * 2 + t) % 2 == 1:
                    st.emit_one()
    st.wait(C_V + 0)
    p4_reads(0, 0)
    for j in range(16):
        e("s_waitcnt lgkmcnt(0)")
        st.release(C_V + j)
        p4_mfma(j, j & 1, 0)
        if j + 1 < 16:
            st.wait(C_V + j + 1)
            p4_reads(j + 1, (j + 1) & 1)
        p4_mfma(j, j & 1, 1)
    st.emit_all()
    stamp()
    e("s_barrier")
    e("s_nop 15")
    e("s_lshr_b32 s%d, s%d, 1" % (sT, sW))
    e("s_lshl_b32 s%d, s%d, 8" % (sT, sT))
    e("s_add_u32 s%d, s%d, %d" % (sT, sT, SH))
    e("s_and_b32 s%d, s%d, 1" % (sT2, sW))
    e("s_lshl_b32 s%d, s%d, 3" % (sT2, sT2))
    e("v_and_b32 v%d, 15, v%d" % (vT0, vQ32))
    e("v_xor_b32 v%d, v%d, v%d" % (vT0, vHf, vT0))
    e("v_xor_b32 v%d, s%d, v%d" % (vT0, sT2, vT0))
    e("v_lshlrev_b32 v%d, 4, v%d" % (vT0, vT0))
    e("v_lshl_add_u32 v%d, v%d, 9, v%d" % (vT0, vQ32, vT0))
    e("v_add_u32 v%d, s%d, v%d" % (vA0, sT, vT0))
    for D in range(2):
        for t in range(2):
            acc = ACC + (D * 2 + t) * 16
            for g in range(4):
                e("v_cvt_pk_bf16_f32 v%d, v%d, v%d" % (vS + 8, acc + 4 * g, acc + 4 * g + 1))
                e("v_cvt_pk_bf16_f32 v%d, v%d, v%d" % (vS + 9, acc + 4 * g + 2, acc + 4 * g + 3))
                e("v_xor_b32 v%d, %d, v%d" % (vA1, (4 * D + 2 * (g & 1)) << 4, vA0))
                e("ds_write_b64 v%d, %s offset:%d" % (vA1, vr(vS + 8, 2), t * 16384 + (g >> 1) * 8))
    barrier()
    e("v_and_b32 v%d, 15, v%d" % (vT0, vLane))
    e("v_lshrrev_b32 v%d, 4, v%d" % (vT1, vLane))
    e("v_xor_b32 v%d, v%d, v%d" % (vT1, vT1, vT0))
    e("v_lshlrev_b32 v%d, 4, v%d" % (vT1, vT1))
    e("v_lshl_add_u32 v%d, v%d, 9, v%d" % (vT1, vT0, vT1))
    e("v_add_u32 v%d, %d, v%d" % (vA0, SH, vT1))
    for T3 in range(4):
        e("v_xor_b32 v%d, %d, v%d" % (vA1, (4 * T3) << 4, vA0))
        for Th in range(2):
            T = Th * 4 + T3
            for qt in range(4):
                e("ds_read_b128 %s, v%d offset:%d" % (ar((T * 4 + qt) * 4, 4), vA1, qt * 8192 + Th * 256))
        e("s_waitcnt lgkmcnt(0)")

    stamp()
    cm("==== phase 5 ====")
    def p5_reads(T, buf):
        base = FB + buf * 32
        off = st.chunks[C_WO + T]['off']
        for ct in range(7):
            for a in range(2):
                e("ds_read_b64_tr_b16 %s, v%d offset:%d" % (vr(base + ct * 4 + a * 2, 2), vWOr, off + a * 16 * 224 + ct * 32))
    def p5_mfma(T, buf, cts):
        base = FB + buf * 32
        for ct in cts:
            for qt in range(4):
                acc = ACC + (ct * 4 + qt) * 4
                c = "0" if T == 0 else vr(acc, 4)
                e("v_mfma_f32_16x16x32_bf16 %s, %s, %s, %s" % (vr(acc, 4), vr(base + ct * 4, 4), ar((T * 4 + qt) * 4, 4), c))
            st.emit_one()
    st.wait(C_WO + 0)
    p5_reads(0, 0)
    for T in range(8):
        e("s_waitcnt lgkmcnt(0)")
        st.release(C_WO + T)
        p5_mfma(T, T & 1, [0, 1, 2, 3])
        if T + 1 < 8:
            st.wait(C_WO + T + 1)
            p5_reads(T + 1, (T + 1) & 1)
        p5_mfma(T, T & 1, [4, 5, 6])
    st.emit_all()
    e("s_nop 15")
    stamp()
    e("v_lshlrev_b32 v%d, 4, v%d" % (vA0, vLane))
    for ti in range(28):
        acc = ACC + ti * 4
        if ti % 4 == 0:
            e("s_add_u32 s%d, s%d, %d" % (sT, sPb, ti * 1024))
        e("buffer_store_dwordx4 %s, v%d, s[%d:%d], s%d offen offset:%d%s" % (vr(acc, 4), vA0, sWS, sWS + 3, sT, (ti % 4) * 1024, STPOL))
    e("s_waitcnt vmcnt(0)")
    stamp()
    if STAMPS:
        i = nstamp[0]; nstamp[0] += 2
        e("s_mov_b64 s[%d:%d], s[92:93]" % (64 + 2 * i, 65 + 2 * i))
        e("s_memrealtime s[%d:%d]" % (66 + 2 * i, 67 + 2 * i))
        e("s_waitcnt lgkmcnt(0)")
    stamp_flush()
    lab("L_main_end")
    e("s_endpgm")

def gen_reduce():
    L.append(".p2align 8")
    L.append(".globl reduce_kernel")
    L.append(".type reduce_kernel,@function")
    lab("reduce_kernel")
    e("s_cmp_ge_u32 s2, 448")
    e("s_cbranch_scc1 L_red_end")
    if STAMPS:
        e("s_memrealtime s[32:33]")
        e("s_waitcnt lgkmcnt(0)")
    e("s_load_dwordx2 s[4:5], s[0:1], 40")
    e("s_load_dwordx2 s[6:7], s[0:1], 56")
    e("v_lshrrev_b32 v1, 6, v0")
    e("v_and_b32 v2, 63, v0")
    e("s_and_b32 s20, s2, 7")
    e("v_readfirstlane_b32 s21, v1")
    e("s_lshr_b32 s22, s2, 3")
    e("s_cmp_ge_u32 s22, 28")
    e("s_cselect_b32 s23, 1, 0")
    e("s_mul_i32 s24, s23, 28")
    e("s_sub_u32 s24, s22, s24")
    e("s_waitcnt lgkmcnt(0)")
    srd(8, 4, 8 * 128 * 448 * 2)
    srd(12, 6, 256 * 4 * 28 * 1024)
    e("s_lshl_b32 s25, s20, 1")
    e("s_add_u32 s25, s25, s23")
    e("s_lshl_b32 s25, s25, 6")
    e("s_add_u32 s25, s25, s21")
    e("s_mul_i32 s25, s25, 28")
    e("s_add_u32 s25, s25, s24")
    e("s_lshl_b32 s25, s25, 10")
    e("v_lshlrev_b32 v3, 4, v2")
    e("s_nop 4")
    for h in range(16):
        e("s_add_u32 s26, s25, %d" % (h * 4 * 28 * 1024))
        e("buffer_load_dwordx4 v[%d:%d], v3, s[12:15], s26 offen" % (8 + 4 * h, 11 + 4 * h))
    e("s_and_b32 s27, s24, 3")
    e("s_lshr_b32 s28, s24, 2")
    e("s_lshl_b32 s29, s20, 7")
    e("s_lshl_b32 s30, s23, 6")
    e("s_add_u32 s29, s29, s30")
    e("s_lshl_b32 s30, s27, 4")
    e("s_add_u32 s29, s29, s30")
    e("s_mul_i32 s29, s29, 896")
    e("s_mul_i32 s30, s21, 224")
    e("s_add_u32 s29, s29, s30")
    e("s_lshl_b32 s30, s28, 5")
    e("s_add_u32 s29, s29, s30")
    e("v_and_b32 v4, 15, v2")
    e("v_mul_u32_u24 v4, 896, v4")
    e("v_lshrrev_b32 v5, 4, v2")
    e("v_lshl_add_u32 v4, v5, 3, v4")
    for h in range(1, 16):
        e("s_waitcnt vmcnt(%d)" % (15 - h))
        for i in range(4):
            e("v_add_f32 v%d, v%d, v%d" % (8 + i, 8 + i, 8 + 4 * h + i))
    e("v_cvt_pk_bf16_f32 v8, v8, v9")
    e("v_cvt_pk_bf16_f32 v9, v10, v11")
    e("buffer_store_dwordx2 v[8:9], v4, s[8:11], s29 offen")
    e("s_waitcnt vmcnt(0)")
    if STAMPS:
        e("s_memrealtime s[34:35]")
        e("s_waitcnt lgkmcnt(0)")
        e("s_mov_b32 s14, 0x10000000")
        e("s_lshl_b32 s26, s2, 2")
        e("s_add_u32 s26, s26, s21")
        e("s_lshl_b32 s26, s26, 4")
        e("s_add_u32 s26, s26, %d" % (129 << 20))
        e("v_mov_b32 v8, s32")
        e("v_mov_b32 v9, s33")
        e("v_mov_b32 v10, s34")
        e("v_mov_b32 v11, s35")
        e("v_mov_b32 v3, 0")
        e("buffer_store_dwordx4 v[8:11], v3, s[12:15], s26 offen")
    lab("L_red_end")
    e("s_endpgm")

HEADER = """; Kernarg layout for this problem (64 bytes, ptrs only, base s[0:1]):
;   offset   0: d_in[0] x  shape=(8, 128, 448) dtype=bfloat16
;   offset   8: d_in[1] k_cache  shape=(8, 16, 512, 256) dtype=bfloat16
;   offset  16: d_in[2] v_cache  shape=(8, 16, 512, 256) dtype=bfloat16
;   offset  24: d_in[3] wq  shape=(448, 4096) dtype=bfloat16
;   offset  32: d_in[4] wo  shape=(4096, 448) dtype=bfloat16
;   offset  40: d_out     shape=(8, 128, 448) dtype=bfloat16
;   offset  48: d_debug   256 bytes
;   offset  56: d_ws      268435456 bytes workspace
; generated by gen.py
; @launch kernel=%s_kernel grid=(256,1,1) block=(256,1,1) lds=%d
; @launch kernel=reduce_kernel grid=(448,1,1) block=(256,1,1) lds=0
.amdgcn_target "amdgcn-amd-amdhsa--gfx950"
.text
.globl %s_kernel
.p2align 8
.type %s_kernel,@function
""" % (NAME, LDS_TOTAL, NAME, NAME)

FOOTER = """.section .rodata,"a"
.p2align 6
.amdhsa_kernel %s_kernel
  .amdhsa_next_free_vgpr 384
  .amdhsa_next_free_sgpr 102
  .amdhsa_accum_offset 256
  .amdhsa_group_segment_fixed_size 0
  .amdhsa_kernarg_size 64
  .amdhsa_user_sgpr_count 2
  .amdhsa_user_sgpr_kernarg_segment_ptr 1
  .amdhsa_system_sgpr_workgroup_id_x 1
.end_amdhsa_kernel
.p2align 6
.amdhsa_kernel reduce_kernel
  .amdhsa_next_free_vgpr 80
  .amdhsa_next_free_sgpr 40
  .amdhsa_accum_offset 80
  .amdhsa_group_segment_fixed_size 0
  .amdhsa_kernarg_size 64
  .amdhsa_user_sgpr_count 2
  .amdhsa_user_sgpr_kernarg_segment_ptr 1
  .amdhsa_system_sgpr_workgroup_id_x 1
.end_amdhsa_kernel
""" % NAME

gen_main()
gen_reduce()
with open(OUT, "w") as f:
    f.write(HEADER + "\n".join(L) + "\n" + FOOTER)
print("wrote", OUT, len(L), "lines")
```

```python
import struct, sys, os
KVPOL = os.environ.get("KVPOL", " nt")
STPOL = os.environ.get("STPOL", " sc1")

OUT = sys.argv[1] if len(sys.argv) > 1 else "standalone__mha_block_cached__near_ridge.s"
NAME = "standalone__mha_block_cached__near_ridge"

L = []
def e(s): L.append("    " + s)
def lab(s): L.append(s + ":")
def cm(s): L.append("    ; " + s)

def f32bits(x): return struct.unpack("<I", struct.pack("<f", x))[0]

RING = 24576
SH = 4 * RING
LDS_TOTAL = 163840

sX, sK, sV, sWQ, sWO, sWS = 20, 24, 28, 32, 36, 40
sW = 44
sRing = 45
sXb, sWQb, sKb, sVb, sWOb, sPb = 46, 47, 48, 49, 50, 51
sT = 52
sC = 53
sB, sH, sHalf = 54, 55, 56
sT2 = 57
sMask = 58
sKc = [96, 97, 98, 99]

vLane = 1
vQ32 = 2
vHf = 3
vT0, vT1, vT2, vT3 = 4, 5, 6, 7
vXK = [8, 9, 10, 11]
vKA = [12, 13, 14, 15]
vTR = [16, 17]
vWOr = 18
vDX = [19, 20]
vDWQ = 21
vDK = [22, 23]
vDV = 24
vDWO = [25, 26, 27, 28, 29, 30, 31]
vA0, vA1, vA2, vA3, vA4, vA5, vA6, vA7 = 32, 33, 34, 35, 36, 37, 38, 39
vS = 40
FB = 64
ACC = 128

def vr(b, n): return "v[%d:%d]" % (b, b + n - 1)
def ar(b, n): return "a[%d:%d]" % (b, b + n - 1)

class Stream:
    def __init__(self):
        self.chunks = []
        self.vm_issued = 0
        self.last_instr = {}
        self.pending = []
        self.next_chunk = 0
        self.pos = 0
    def add(self, kind, idx, size):
        if self.pos + size > RING:
            self.pos = 0
        self.chunks.append(dict(kind=kind, idx=idx, size=size, off=self.pos))
        self.pos += size
    def dep(self, c):
        a = self.chunks[c]
        for p in range(c - 1, -1, -1):
            b = self.chunks[p]
            if a['off'] < b['off'] + b['size'] and b['off'] < a['off'] + a['size']:
                return p
        return -1
    def release(self, consumed):
        while self.next_chunk < len(self.chunks) and self.dep(self.next_chunk) <= consumed:
            c = self.next_chunk
            n = self.chunks[c]['size'] // 1024
            for i in range(n):
                self.pending.append((c, i))
            self.next_chunk += 1
    def emit_one(self):
        if not self.pending:
            return False
        c, n = self.pending.pop(0)
        ch = self.chunks[c]
        emit_dma(ch['kind'], ch['idx'], n, ch['off'] + n * 1024)
        self.vm_issued += 1
        self.last_instr[c] = self.vm_issued
        return True
    def emit_all(self):
        while self.emit_one():
            pass
    def wait(self, c):
        while any(p[0] <= c for p in self.pending):
            self.emit_one()
        n = self.vm_issued - self.last_instr[c]
        e("s_waitcnt vmcnt(%d)" % n)

def emit_dma(kind, idx, n, ringoff):
    e("s_add_u32 m0, s%d, %d" % (sRing, ringoff))
    if kind == 'wq':
        e("s_add_u32 s%d, s%d, %d" % (sT, sWQb, (32 * idx + 8 * n) * 8192))
        e("buffer_load_dwordx4 v%d, s[%d:%d], s%d offen lds" % (vDWQ, sWQ, sWQ + 3, sT))
    elif kind == 'k':
        kt, db = idx
        e("s_add_u32 s%d, s%d, %d" % (sT, sKc[db], (32 * kt + 8 * n) * 512))
        e("buffer_load_dwordx4 v%d, s[%d:%d], s%d offen%s lds" % (vDK[n & 1], sK, sK + 3, sT, KVPOL))
    elif kind == 'v':
        e("s_add_u32 s%d, s%d, %d" % (sT, sVb, (32 * idx + 8 * n) * 512))
        e("buffer_load_dwordx4 v%d, s[%d:%d], s%d offen%s lds" % (vDV, sV, sV + 3, sT, KVPOL))
    elif kind == 'wo':
        e("s_add_u32 s%d, s%d, %d" % (sT, sWOb, (32 * idx) * 896))
        e("buffer_load_dwordx4 v%d, s[%d:%d], s%d offen lds" % (vDWO[n], sWO, sWO + 3, sT))
    else:
        raise ValueError(kind)

def srd(s, lo, nbytes):
    e("s_mov_b32 s%d, s%d" % (s, lo))
    e("s_and_b32 s%d, s%d, 0xffff" % (s + 1, lo + 1))
    e("s_mov_b32 s%d, %d" % (s + 2, nbytes))
    e("s_mov_b32 s%d, 0x00020000" % (s + 3))

import os
STAMPS = bool(os.environ.get("GEN_STAMPS"))
nstamp = [0]
def stamp():
    if not STAMPS: return
    i = nstamp[0]; nstamp[0] += 1
    e("s_memtime s[%d:%d]" % (64 + 2 * i, 65 + 2 * i))
    e("s_waitcnt lgkmcnt(0)")
def stamp_flush():
    if not STAMPS: return
    e("s_mov_b32 s%d, 0x10000000" % (sWS + 2))
    e("s_lshl_b32 s%d, s2, 2" % sT)
    e("s_add_u32 s%d, s%d, s%d" % (sT, sT, sW))
    e("s_lshl_b32 s%d, s%d, 8" % (sT, sT))
    e("s_add_u32 s%d, s%d, %d" % (sT, sT, 128 << 20))
    e("v_mov_b32 v%d, 0" % vA1)
    for i in range(nstamp[0]):
        e("v_mov_b32 v%d, s%d" % (vS, 64 + 2 * i))
        e("v_mov_b32 v%d, s%d" % (vS + 1, 65 + 2 * i))
        e("buffer_store_dwordx2 %s, v%d, s[%d:%d], s%d offen offset:%d" % (vr(vS, 2), vA1, sWS, sWS + 3, sT, 8 * i))
        e("s_nop 2")

def barrier():
    e("s_waitcnt lgkmcnt(0)")
    e("s_barrier")

def gen_main():
    lab(NAME + "_kernel")
    e("s_cmp_ge_u32 s2, 256")
    e("s_cbranch_scc1 L_main_end")
    stamp()
    if STAMPS:
        e("s_memrealtime s[92:93]")
        e("s_waitcnt lgkmcnt(0)")
    e("s_load_dwordx8 s[4:11], s[0:1], 0")
    e("s_load_dwordx8 s[12:19], s[0:1], 32")
    e("v_lshrrev_b32 v%d, 6, v0" % vT0)
    e("v_and_b32 v%d, 63, v0" % vLane)
    e("s_lshr_b32 s%d, s2, 5" % sB)
    e("v_readfirstlane_b32 s%d, v%d" % (sW, vT0))
    e("s_and_b32 s%d, s2, 7" % sH)
    e("s_lshl_b32 s%d, s%d, 1" % (sH, sH))
    e("s_lshr_b32 s%d, s2, 3" % sHalf)
    e("s_and_b32 s%d, s%d, 1" % (sT, sHalf))
    e("s_add_u32 s%d, s%d, s%d" % (sH, sH, sT))
    e("s_lshr_b32 s%d, s2, 4" % sHalf)
    e("s_and_b32 s%d, s%d, 1" % (sHalf, sHalf))
    e("s_mov_b32 s%d, 0x%08x" % (sC, f32bits(1.4426950408889634 / 16.0)))
    e("v_and_b32 v%d, 31, v%d" % (vQ32, vLane))
    e("v_lshrrev_b32 v%d, 5, v%d" % (vHf, vLane))
    e("s_mul_i32 s%d, s%d, %d" % (sRing, sW, RING))
    e("s_waitcnt lgkmcnt(0)")
    srd(sX, 4, 8 * 128 * 448 * 2)
    srd(sK, 6, 8 * 16 * 512 * 256 * 2)
    srd(sV, 8, 8 * 16 * 512 * 256 * 2)
    srd(sWQ, 10, 448 * 4096 * 2)
    srd(sWO, 12, 4096 * 448 * 2)
    srd(sWS, 18, 256 * 4 * 28 * 1024)
    if os.environ.get("NOSHARE"):
        e("s_cmp_eq_u32 s%d, 1" % sHalf)
        for i in range(2):
            e("s_cselect_b32 s60, s%d, s%d" % (sV + i, sK + i))
            e("s_cselect_b32 s61, s%d, s%d" % (sK + i, sV + i))
            e("s_mov_b32 s%d, s60" % (sK + i))
            e("s_mov_b32 s%d, s61" % (sV + i))
    e("s_lshl_b32 s%d, s%d, 1" % (sT, sB))
    e("s_add_u32 s%d, s%d, s%d" % (sT, sT, sHalf))
    e("s_mul_i32 s%d, s%d, %d" % (sXb, sT, 64 * 896))
    e("s_lshl_b32 s%d, s%d, 9" % (sWQb, sH))
    e("s_lshl_b32 s%d, s%d, 7" % (sT, sW))
    e("s_add_u32 s%d, s%d, s%d" % (sWQb, sWQb, sT))
    e("s_lshl_b32 s%d, s%d, 4" % (sT, sB))
    e("s_add_u32 s%d, s%d, s%d" % (sT, sT, sH))
    e("s_lshl_b32 s%d, s%d, 18" % (sT, sT))
    e("s_lshl_b32 s%d, s%d, 16" % (sT2, sW))
    e("s_add_u32 s%d, s%d, s%d" % (sKb, sT, sT2))
    e("s_lshl_b32 s%d, s%d, 7" % (sT2, sW))
    e("s_add_u32 s%d, s%d, s%d" % (sVb, sT, sT2))
    for db in range(4):
        e("s_add_u32 s%d, s%d, %d" % (sT2, sW, db))
        e("s_and_b32 s%d, s%d, 3" % (sT2, sT2))
        e("s_lshl_b32 s%d, s%d, 7" % (sT2, sT2))
        e("s_add_u32 s%d, s%d, s%d" % (sKc[db], sKb, sT2))
    e("s_mul_i32 s%d, s%d, %d" % (sWOb, sH, 256 * 896))
    e("s_mul_i32 s%d, s%d, 224" % (sT, sW))
    e("s_add_u32 s%d, s%d, s%d" % (sWOb, sWOb, sT))
    e("s_lshl_b32 s%d, s2, 2" % sT)
    e("s_add_u32 s%d, s%d, s%d" % (sT, sT, sW))
    e("s_mul_i32 s%d, s%d, %d" % (sPb, sT, 28 * 1024))

    cm("DMA voffsets")
    r8, p8 = vT0, vT1
    e("v_lshrrev_b32 v%d, 3, v%d" % (r8, vLane))
    e("v_and_b32 v%d, 7, v%d" % (p8, vLane))
    e("v_lshrrev_b32 v%d, 1, v%d" % (vT2, r8))
    e("v_xor_b32 v%d, v%d, v%d" % (vT3, p8, vT2))
    e("v_lshlrev_b32 v%d, 4, v%d" % (vA0, vT3))
    e("v_xor_b32 v%d, 64, v%d" % (vA1, vA0))
    e("v_mul_u32_u24 v%d, 896, v%d" % (vA2, r8))
    e("v_add_u32 v%d, v%d, v%d" % (vDX[0], vA2, vA0))
    e("v_add_u32 v%d, v%d, v%d" % (vDX[1], vA2, vA1))
    e("v_lshlrev_b32 v%d, 9, v%d" % (vA2, r8))
    e("v_add_u32 v%d, v%d, v%d" % (vDK[0], vA2, vA0))
    e("v_add_u32 v%d, v%d, v%d" % (vDK[1], vA2, vA1))
    e("v_and_b32 v%d, 1, v%d" % (vT3, vT2))
    e("v_lshlrev_b32 v%d, 2, v%d" % (vT3, vT3))
    e("v_xor_b32 v%d, v%d, v%d" % (vT3, p8, vT3))
    e("v_lshlrev_b32 v%d, 4, v%d" % (vT3, vT3))
    e("v_add_u32 v%d, v%d, v%d" % (vDV, vA2, vT3))
    e("v_lshlrev_b32 v%d, 13, v%d" % (vA2, r8))
    e("v_add_u32 v%d, v%d, v%d" % (vDWQ, vA2, vT3))
    for n in range(7):
        e("v_add_u32 v%d, %d, v%d" % (vT0, 64 * n, vLane))
        e("v_mul_u32_u24 v%d, 4682, v%d" % (vT1, vT0))
        e("v_lshrrev_b32 v%d, 16, v%d" % (vT1, vT1))
        e("v_mul_u32_u24 v%d, 14, v%d" % (vT2, vT1))
        e("v_sub_u32 v%d, v%d, v%d" % (vT2, vT0, vT2))
        e("v_mul_u32_u24 v%d, 896, v%d" % (vT1, vT1))
        e("v_lshlrev_b32 v%d, 4, v%d" % (vT2, vT2))
        e("v_add_u32 v%d, v%d, v%d" % (vDWO[n], vT1, vT2))
    e("s_nop 4")

    st = Stream()
    for j in range(14): st.add('wq', j, 4096)
    for kt in range(4):
        for db in range(4): st.add('k', (kt, db), 4096)
    for j in range(16): st.add('v', j, 4096)
    for t in range(8): st.add('wo', t, 7168)
    C_WQ, C_K, C_V, C_WO = 0, 14, 30, 46

    if not os.environ.get("NOWARM"):
        cm("L2 warm-up prefetch")
        e("s_lshl_b32 s60, s%d, 1" % sB)
        e("s_add_u32 s60, s60, s%d" % sHalf)
        e("s_and_b32 s61, s%d, 1" % sW)
        e("s_mul_i32 s62, s60, 28")
        e("s_mul_i32 s63, s61, 14")
        e("s_add_u32 s62, s62, s63")
        e("s_lshl_b32 s62, s62, 13")
        e("s_lshl_b32 s63, s%d, 9" % sH)
        e("s_add_u32 s62, s62, s63")
        e("s_lshl_b32 s63, s%d, 8" % sH)
        e("s_lshl_b32 s100, s60, 4")
        e("s_add_u32 s63, s63, s100")
        e("s_mul_i32 s63, s63, 896")
        e("s_mul_i32 s100, s61, 7168")
        e("s_add_u32 s63, s63, s100")
        e("v_lshlrev_b32 v%d, 13, v%d" % (vT0, vHf))
        e("v_lshl_add_u32 v%d, v%d, 4, v%d" % (vT0, vQ32, vT0))
        e("v_lshlrev_b32 v%d, 4, v%d" % (vT1, vLane))
        e("s_cmp_ge_u32 s%d, 2" % sW)
        e("s_cbranch_scc1 L_warm_wo")
        for k in range(7):
            e("s_add_u32 s100, s62, %d" % (k * 2 * 8192))
            e("buffer_load_dwordx4 v[%d:%d], v%d, s[%d:%d], s100 offen" % (ACC + 4 * k, ACC + 4 * k + 3, vT0, sWQ, sWQ + 3))
        e("s_branch L_warm_done")
        lab("L_warm_wo")
        for k in range(7):
            e("s_add_u32 s100, s63, %d" % (k * 1024))
            e("buffer_load_dwordx4 v[%d:%d], v%d, s[%d:%d], s100 offen" % (ACC + 4 * k, ACC + 4 * k + 3, vT1, sWO, sWO + 3))
        lab("L_warm_done")
        st.vm_issued += 7
    cm("x tile DMA")
    e("s_mul_i32 s%d, s%d, 14" % (sT2, sW))
    for k in range(14):
        e("s_add_u32 s60, s%d, %d" % (sT2, k))
        e("s_lshr_b32 s61, s60, 3")
        e("s_and_b32 s62, s60, 7")
        e("s_lshl_b32 s63, s60, 10")
        e("s_add_u32 m0, s63, %d" % SH)
        e("s_mul_i32 s63, s62, %d" % (8 * 896))
        e("s_lshl_b32 s61, s61, 7")
        e("s_add_u32 s63, s63, s61")
        e("s_add_u32 s63, s63, s%d" % sXb)
        e("buffer_load_dwordx4 v%d, s[%d:%d], s63 offen lds" % (vDX[k & 1], sX, sX + 3))
        st.vm_issued += 1
    x_last = st.vm_issued
    st.release(-1)
    st.emit_all()

    cm("LDS read address regs")
    e("v_lshrrev_b32 v%d, 1, v%d" % (vT0, vQ32))
    e("v_and_b32 v%d, 7, v%d" % (vT0, vT0))
    e("v_lshlrev_b32 v%d, 7, v%d" % (vT1, vQ32))
    for k in range(4):
        e("v_add_u32 v%d, %d, v%d" % (vT2, 2 * k, vHf))
        e("v_xor_b32 v%d, v%d, v%d" % (vT2, vT2, vT0))
        e("v_lshl_add_u32 v%d, v%d, 4, v%d" % (vT2, vT2, vT1))
        e("v_add_u32 v%d, %d, v%d" % (vXK[k], SH, vT2))
        e("v_add_u32 v%d, s%d, v%d" % (vKA[k], sRing, vT2))
    e("v_lshrrev_b32 v%d, 4, v%d" % (vT0, vLane))
    e("v_and_b32 v%d, 1, v%d" % (vT0, vT0))
    e("v_and_b32 v%d, 15, v%d" % (vT1, vLane))
    e("v_lshrrev_b32 v%d, 2, v%d" % (vT2, vT1))
    e("v_and_b32 v%d, 3, v%d" % (vT3, vT1))
    e("v_lshl_add_u32 v%d, v%d, 3, v%d" % (vA0, vHf, vT2))
    e("v_lshlrev_b32 v%d, 7, v%d" % (vA0, vA0))
    e("v_lshrrev_b32 v%d, 1, v%d" % (vA1, vT3))
    e("v_lshl_add_u32 v%d, v%d, 1, v%d" % (vA1, vT0, vA1))
    e("v_lshrrev_b32 v%d, 1, v%d" % (vA2, vT2))
    e("v_lshlrev_b32 v%d, 2, v%d" % (vA2, vA2))
    e("v_xor_b32 v%d, v%d, v%d" % (vA1, vA1, vA2))
    e("v_lshl_add_u32 v%d, v%d, 4, v%d" % (vA0, vA1, vA0))
    e("v_and_b32 v%d, 1, v%d" % (vA1, vT3))
    e("v_lshl_add_u32 v%d, v%d, 3, v%d" % (vA0, vA1, vA0))
    e("v_add_u32 v%d, s%d, v%d" % (vTR[0], sRing, vA0))
    e("v_xor_b32 v%d, 64, v%d" % (vTR[1], vTR[0]))
    e("v_lshrrev_b32 v%d, 4, v%d" % (vA0, vLane))
    e("v_lshl_add_u32 v%d, v%d, 2, v%d" % (vA0, vA0, vT2))
    e("v_mul_u32_u24 v%d, 224, v%d" % (vA0, vA0))
    e("v_lshl_add_u32 v%d, v%d, 3, v%d" % (vA0, vT3, vA0))
    e("v_add_u32 v%d, s%d, v%d" % (vWOr, sRing, vA0))

    e("s_waitcnt vmcnt(%d)" % (st.vm_issued - x_last))
    e("s_barrier")

    stamp()
    cm("==== phase 1: Q^T = wq^T x^T ====")
    def p1_reads(j, buf):
        base = FB + buf * 32
        off = st.chunks[C_WQ + j]['off']
        for ks in range(2):
            for D in range(2):
                for a in range(2):
                    r = base + (ks * 2 + D) * 4 + a * 2
                    e("ds_read_b64_tr_b16 %s, v%d offset:%d" % (vr(r, 2), vTR[D], off + (16 * ks + 4 * a) * 128))
            s = 2 * j + ks
            for t in range(2):
                r = base + 16 + (ks * 2 + t) * 4
                e("ds_read_b128 %s, v%d offset:%d" % (vr(r, 4), vXK[s & 3], (s >> 2) * 8192 + t * 4096))
    def p1_mfma(j, buf, half):
        base = FB + buf * 32
        ks = half
        for D in range(2):
            for t in range(2):
                acc = ACC + (D * 2 + t) * 16
                c = "0" if (j == 0 and ks == 0) else vr(acc, 16)
                e("v_mfma_f32_32x32x16_bf16 %s, %s, %s, %s" % (vr(acc, 16), vr(base + (ks * 2 + D) * 4, 4), vr(base + 16 + (ks * 2 + t) * 4, 4), c))
                if (D * 2 + t) % 2 == 1:
                    st.emit_one()
    st.wait(C_WQ + 0)
    p1_reads(0, 0)
    for j in range(14):
        e("s_waitcnt lgkmcnt(0)")
        st.release(C_WQ + j)
        p1_mfma(j, j & 1, 0)
        if j + 1 < 14:
            st.wait(C_WQ + j + 1)
            p1_reads(j + 1, (j + 1) & 1)
        p1_mfma(j, j & 1, 1)
    st.emit_all()
    stamp()
    e("s_barrier")
    e("s_nop 15")
    e("s_lshr_b32 s%d, s%d, 1" % (sT, sW))
    e("s_lshl_b32 s%d, s%d, 8" % (sT, sT))
    e("s_add_u32 s%d, s%d, %d" % (sT, sT, SH))
    e("s_and_b32 s%d, s%d, 1" % (sT2, sW))
    e("s_lshl_b32 s%d, s%d, 3" % (sT2, sT2))
    e("v_and_b32 v%d, 15, v%d" % (vT0, vQ32))
    e("v_xor_b32 v%d, s%d, v%d" % (vT0, sT2, vT0))
    e("v_lshlrev_b32 v%d, 4, v%d" % (vT0, vT0))
    e("v_lshl_add_u32 v%d, v%d, 9, v%d" % (vT0, vQ32, vT0))
    e("v_lshl_add_u32 v%d, v%d, 3, v%d" % (vT0, vHf, vT0))
    e("v_add_u32 v%d, s%d, v%d" % (vA0, sT, vT0))
    for D in range(2):
        for t in range(2):
            acc = ACC + (D * 2 + t) * 16
            for g in range(4):
                e("v_cvt_pk_bf16_f32 v%d, v%d, v%d" % (vS + 0, acc + 4 * g, acc + 4 * g + 1))
                e("v_cvt_pk_bf16_f32 v%d, v%d, v%d" % (vS + 1, acc + 4 * g + 2, acc + 4 * g + 3))
                e("v_xor_b32 v%d, %d, v%d" % (vA1, (4 * D + g) << 4, vA0))
                e("ds_write_b64 v%d, %s offset:%d" % (vA1, vr(vS, 2), t * 16384))
    barrier()
    e("v_and_b32 v%d, 15, v%d" % (vT0, vQ32))
    e("v_xor_b32 v%d, v%d, v%d" % (vT0, vHf, vT0))
    e("v_lshlrev_b32 v%d, 4, v%d" % (vT0, vT0))
    e("v_lshl_add_u32 v%d, v%d, 9, v%d" % (vT0, vQ32, vT0))
    e("v_add_u32 v%d, %d, v%d" % (vA0, SH, vT0))
    for db in range(4):
        e("s_add_u32 s%d, s%d, %d" % (sT2, sW, db))
        e("s_and_b32 s%d, s%d, 3" % (sT2, sT2))
        e("s_lshl_b32 s%d, s%d, 7" % (sT2, sT2))
        e("v_xor_b32 v%d, s%d, v%d" % (vA1, sT2, vA0))
        for k in range(4):
            sidx = 4 * db + k
            e("v_xor_b32 v%d, %d, v%d" % (vA2, k << 5, vA1))
            for t in range(2):
                e("ds_read_b128 %s, v%d offset:%d" % (ar((sidx * 2 + t) * 4, 4), vA2, t * 16384))
        e("s_waitcnt lgkmcnt(0)")

    stamp()
    cm("==== phase 2 ====")
    def p2_reads(c, buf):
        base = FB + buf * 32
        off = st.chunks[C_K + c]['off']
        for k in range(4):
            e("ds_read_b128 %s, v%d offset:%d" % (vr(base + 4 * k, 4), vKA[k], off))
    def p2_mfma(c, buf, half):
        base = FB + buf * 32
        kt, db = divmod(c, 4)
        for k in range(2 * half, 2 * half + 2):
            s = 4 * db + k
            for t in range(2):
                acc = ACC + (kt * 2 + t) * 16
                cc = "0" if s == 0 else vr(acc, 16)
                e("v_mfma_f32_32x32x16_bf16 %s, %s, %s, %s" % (vr(acc, 16), vr(base + 4 * k, 4), ar((s * 2 + t) * 4, 4), cc))
            st.emit_one()
    st.wait(C_K + 0)
    p2_reads(0, 0)
    for c in range(16):
        e("s_waitcnt lgkmcnt(0)")
        st.release(C_K + c)
        p2_mfma(c, c & 1, 0)
        if c + 1 < 16:
            st.wait(C_K + c + 1)
            p2_reads(c + 1, (c + 1) & 1)
        p2_mfma(c, c & 1, 1)
    st.emit_all()
    e("s_nop 15")

    stamp()
    cm("==== phase 3: softmax ====")
    e("s_mov_b32 s%d, 0xffff0000" % sMask)
    vM = [vS + 0, vS + 1]
    def accreg(kt, t, i): return ACC + (kt * 2 + t) * 16 + i
    for t in range(2):
        for kt in range(4):
            for i in range(0, 16, 2):
                a0, a1 = accreg(kt, t, i), accreg(kt, t, i + 1)
                e("v_cvt_pk_bf16_f32 v%d, v%d, v%d" % (a1, a0, a1))
                e("v_lshlrev_b32 v%d, 16, v%d" % (a0, a1))
                e("v_and_b32 v%d, s%d, v%d" % (a1, sMask, a1))
    mreg = [vS + 0, vS + 2]
    lreg = [vS + 1, vS + 3]
    tmpm = [vS + 4, vS + 5]
    for t in range(2):
        vals = [accreg(kt, t, i) for kt in range(4) for i in range(16)]
        e("v_max_f32 v%d, v%d, v%d" % (mreg[t], vals[0], vals[1]))
        e("v_max_f32 v%d, v%d, v%d" % (tmpm[t], vals[2], vals[3]))
    for idx in range(4, 64, 4):
        for t in range(2):
            vals = [accreg(kt, t, i) for kt in range(4) for i in range(16)]
            e("v_max3_f32 v%d, v%d, v%d, v%d" % (mreg[t], mreg[t], vals[idx], vals[idx + 1]))
            e("v_max3_f32 v%d, v%d, v%d, v%d" % (tmpm[t], tmpm[t], vals[idx + 2], vals[idx + 3]))
    for t in range(2):
        e("v_max_f32 v%d, v%d, v%d" % (mreg[t], mreg[t], tmpm[t]))
    nmc = [vS + 6, vS + 7]
    for t in range(2):
        e("v_mul_f32 v%d, s%d, v%d" % (nmc[t], sC, mreg[t]))
    for kt in range(4):
        for i in range(16):
            for t in range(2):
                a = accreg(kt, t, i)
                e("v_fma_f32 v%d, v%d, s%d, -v%d" % (a, a, sC, nmc[t]))
            for t in range(2):
                a = accreg(kt, t, i)
                e("v_exp_f32 v%d, v%d" % (a, a))
    e("s_nop 0")
    sp = [[vS + 8, vS + 9], [vS + 10, vS + 11]]
    for t in range(2):
        vals = [accreg(kt, t, i) for kt in range(4) for i in range(16)]
        e("v_add_f32 v%d, v%d, v%d" % (sp[t][0], vals[0], vals[1]))
        e("v_add_f32 v%d, v%d, v%d" % (sp[t][1], vals[2], vals[3]))
    for idx in range(4, 64, 2):
        for t in range(2):
            vals = [accreg(kt, t, i) for kt in range(4) for i in range(16)]
            e("v_add_f32 v%d, v%d, v%d" % (sp[t][0], sp[t][0], vals[idx]))
            e("v_add_f32 v%d, v%d, v%d" % (sp[t][1], sp[t][1], vals[idx + 1]))
    for t in range(2):
        e("v_add_f32 v%d, v%d, v%d" % (lreg[t], sp[t][0], sp[t][1]))
    e("s_lshl_b32 s%d, s%d, 10" % (sT, sW))
    e("s_add_u32 s%d, s%d, %d" % (sT, sT, SH))
    e("v_lshlrev_b32 v%d, 3, v%d" % (vT0, vQ32))
    e("v_lshl_add_u32 v%d, v%d, 9, v%d" % (vT1, vHf, vT0))
    e("v_add_u32 v%d, s%d, v%d" % (vA0, sT, vT1))
    e("v_add_u32 v%d, %d, v%d" % (vA1, SH, vT0))
    for t in range(2):
        e("ds_write_b64 v%d, %s offset:%d" % (vA0, vr(mreg[t], 2), t * 256))
    barrier()
    ML = FB
    for t in range(2):
        for k in range(8):
            e("ds_read_b64 %s, v%d offset:%d" % (vr(ML + (t * 8 + k) * 2, 2), vA1, k * 512 + t * 256))
        e("s_waitcnt lgkmcnt(0)")
    barrier()
    fac = [vS + 12, vS + 13]
    for t in range(2):
        mm = vS + 14 + t
        ms = [ML + (t * 8 + k) * 2 for k in range(8)]
        e("v_max3_f32 v%d, v%d, v%d, v%d" % (mm, ms[0], ms[1], ms[2]))
        e("v_max3_f32 v%d, v%d, v%d, v%d" % (mm, mm, ms[3], ms[4]))
        e("v_max3_f32 v%d, v%d, v%d, v%d" % (mm, mm, ms[5], ms[6]))
        e("v_max_f32 v%d, v%d, v%d" % (mm, mm, ms[7]))
        for k in range(8):
            e("v_sub_f32 v%d, v%d, v%d" % (ms[k], ms[k], mm))
            e("v_mul_f32 v%d, s%d, v%d" % (ms[k], sC, ms[k]))
            e("v_exp_f32 v%d, v%d" % (ms[k], ms[k]))
        e("s_nop 0")
        lg = vS + 16 + t
        e("v_mul_f32 v%d, v%d, v%d" % (lg, ms[0], ms[0] + 1))
        for k in range(1, 8):
            e("v_fmac_f32 v%d, v%d, v%d" % (lg, ms[k], ms[k] + 1))
        e("v_rcp_f32 v%d, v%d" % (lg, lg))
        e("v_sub_f32 v%d, v%d, v%d" % (fac[t], mreg[t], mm))
        e("v_mul_f32 v%d, s%d, v%d" % (fac[t], sC, fac[t]))
        e("v_exp_f32 v%d, v%d" % (fac[t], fac[t]))
        e("s_nop 0")
        e("v_mul_f32 v%d, v%d, v%d" % (fac[t], fac[t], lg))
    e("s_lshl_b32 s%d, s%d, 8" % (sT, sW))
    e("s_add_u32 s%d, s%d, %d" % (sT, sT, SH))
    e("v_and_b32 v%d, 15, v%d" % (vT0, vQ32))
    e("v_lshlrev_b32 v%d, 4, v%d" % (vT0, vT0))
    e("v_lshl_add_u32 v%d, v%d, 10, v%d" % (vT0, vQ32, vT0))
    e("v_lshl_add_u32 v%d, v%d, 3, v%d" % (vT1, vHf, vT0))
    e("v_add_u32 v%d, s%d, v%d" % (vA0, sT, vT1))
    for kt in range(4):
        for g in range(4):
            e("v_xor_b32 v%d, %d, v%d" % (vA1, (4 * kt + g) << 4, vA0))
            for t in range(2):
                a = accreg(kt, t, 4 * g)
                for i in range(4):
                    e("v_mul_f32 v%d, v%d, v%d" % (a + i, a + i, fac[t]))
                pk = vS + 18 + 2 * t
                e("v_cvt_pk_bf16_f32 v%d, v%d, v%d" % (pk, a, a + 1))
                e("v_cvt_pk_bf16_f32 v%d, v%d, v%d" % (pk + 1, a + 2, a + 3))
                e("ds_write_b64 v%d, %s offset:%d" % (vA1, vr(pk, 2), t * 32768))
    vPR = [vS + 0, vS + 1, vS + 2, vS + 3, vS + 4, vS + 5, vS + 6, vS + 7]
    e("v_and_b32 v%d, 15, v%d" % (vT0, vQ32))
    e("v_xor_b32 v%d, v%d, v%d" % (vT0, vHf, vT0))
    e("v_lshlrev_b32 v%d, 4, v%d" % (vT0, vT0))
    e("v_lshl_add_u32 v%d, v%d, 10, v%d" % (vT0, vQ32, vT0))
    e("v_add_u32 v%d, %d, v%d" % (vA2, SH, vT0))
    e("s_waitcnt lgkmcnt(0)")
    for k in range(8):
        e("v_xor_b32 v%d, %d, v%d" % (vPR[k], (2 * k) << 4, vA2))
    e("s_barrier")

    stamp()
    cm("==== phase 4 ====")
    def p4_reads(j, buf):
        base = FB + buf * 32
        off = st.chunks[C_V + j]['off']
        for ks in range(2):
            for D in range(2):
                for a in range(2):
                    r = base + (ks * 2 + D) * 4 + a * 2
                    e("ds_read_b64_tr_b16 %s, v%d offset:%d" % (vr(r, 2), vTR[D], off + (16 * ks + 4 * a) * 128))
            s = 2 * j + ks
            for t in range(2):
                r = base + 16 + (ks * 2 + t) * 4
                e("ds_read_b128 %s, v%d offset:%d" % (vr(r, 4), vPR[s & 7], (s >> 3) * 256 + t * 32768))
    def p4_mfma(j, buf, half):
        base = FB + buf * 32
        ks = half
        for D in range(2):
            for t in range(2):
                acc = ACC + (D * 2 + t) * 16
                c = "0" if (j == 0 and ks == 0) else vr(acc, 16)
                e("v_mfma_f32_32x32x16_bf16 %s, %s, %s, %s" % (vr(acc, 16), vr(base + (ks * 2 + D) * 4, 4), vr(base + 16 + (ks * 2 + t) * 4, 4), c))
                if (D * 2 + t) % 2 == 1:
                    st.emit_one()
    st.wait(C_V + 0)
    p4_reads(0, 0)
    for j in range(16):
        e("s_waitcnt lgkmcnt(0)")
        st.release(C_V + j)
        p4_mfma(j, j & 1, 0)
        if j + 1 < 16:
            st.wait(C_V + j + 1)
            p4_reads(j + 1, (j + 1) & 1)
        p4_mfma(j, j & 1, 1)
    st.emit_all()
    stamp()
    e("s_barrier")
    e("s_nop 15")
    e("s_lshr_b32 s%d, s%d, 1" % (sT, sW))
    e("s_lshl_b32 s%d, s%d, 8" % (sT, sT))
    e("s_add_u32 s%d, s%d, %d" % (sT, sT, SH))
    e("s_and_b32 s%d, s%d, 1" % (sT2, sW))
    e("s_lshl_b32 s%d, s%d, 3" % (sT2, sT2))
    e("v_and_b32 v%d, 15, v%d" % (vT0, vQ32))
    e("v_xor_b32 v%d, v%d, v%d" % (vT0, vHf, vT0))
    e("v_xor_b32 v%d, s%d, v%d" % (vT0, sT2, vT0))
    e("v_lshlrev_b32 v%d, 4, v%d" % (vT0, vT0))
    e("v_lshl_add_u32 v%d, v%d, 9, v%d" % (vT0, vQ32, vT0))
    e("v_add_u32 v%d, s%d, v%d" % (vA0, sT, vT0))
    for D in range(2):
        for t in range(2):
            acc = ACC + (D * 2 + t) * 16
            for g in range(4):
                e("v_cvt_pk_bf16_f32 v%d, v%d, v%d" % (vS + 8, acc + 4 * g, acc + 4 * g + 1))
                e("v_cvt_pk_bf16_f32 v%d, v%d, v%d" % (vS + 9, acc + 4 * g + 2, acc + 4 * g + 3))
                e("v_xor_b32 v%d, %d, v%d" % (vA1, (4 * D + 2 * (g & 1)) << 4, vA0))
                e("ds_write_b64 v%d, %s offset:%d" % (vA1, vr(vS + 8, 2), t * 16384 + (g >> 1) * 8))
    barrier()
    e("v_and_b32 v%d, 15, v%d" % (vT0, vLane))
    e("v_lshrrev_b32 v%d, 4, v%d" % (vT1, vLane))
    e("v_xor_b32 v%d, v%d, v%d" % (vT1, vT1, vT0))
    e("v_lshlrev_b32 v%d, 4, v%d" % (vT1, vT1))
    e("v_lshl_add_u32 v%d, v%d, 9, v%d" % (vT1, vT0, vT1))
    e("v_add_u32 v%d, %d, v%d" % (vA0, SH, vT1))
    for T3 in range(4):
        e("v_xor_b32 v%d, %d, v%d" % (vA1, (4 * T3) << 4, vA0))
        for Th in range(2):
            T = Th * 4 + T3
            for qt in range(4):
                e("ds_read_b128 %s, v%d offset:%d" % (ar((T * 4 + qt) * 4, 4), vA1, qt * 8192 + Th * 256))
        e("s_waitcnt lgkmcnt(0)")

    stamp()
    cm("==== phase 5 ====")
    def p5_reads(T, buf):
        base = FB + buf * 32
        off = st.chunks[C_WO + T]['off']
        for ct in range(7):
            for a in range(2):
                e("ds_read_b64_tr_b16 %s, v%d offset:%d" % (vr(base + ct * 4 + a * 2, 2), vWOr, off + a * 16 * 224 + ct * 32))
    def p5_mfma(T, buf, cts):
        base = FB + buf * 32
        for ct in cts:
            for qt in range(4):
                acc = ACC + (ct * 4 + qt) * 4
                c = "0" if T == 0 else vr(acc, 4)
                e("v_mfma_f32_16x16x32_bf16 %s, %s, %s, %s" % (vr(acc, 4), vr(base + ct * 4, 4), ar((T * 4 + qt) * 4, 4), c))
            st.emit_one()
    st.wait(C_WO + 0)
    p5_reads(0, 0)
    for T in range(8):
        e("s_waitcnt lgkmcnt(0)")
        st.release(C_WO + T)
        p5_mfma(T, T & 1, [0, 1, 2, 3])
        if T + 1 < 8:
            st.wait(C_WO + T + 1)
            p5_reads(T + 1, (T + 1) & 1)
        p5_mfma(T, T & 1, [4, 5, 6])
    st.emit_all()
    e("s_nop 15")
    stamp()
    e("v_lshlrev_b32 v%d, 4, v%d" % (vA0, vLane))
    for ti in range(28):
        acc = ACC + ti * 4
        if ti % 4 == 0:
            e("s_add_u32 s%d, s%d, %d" % (sT, sPb, ti * 1024))
        e("buffer_store_dwordx4 %s, v%d, s[%d:%d], s%d offen offset:%d%s" % (vr(acc, 4), vA0, sWS, sWS + 3, sT, (ti % 4) * 1024, STPOL))
    e("s_waitcnt vmcnt(0)")
    e("s_barrier")
    stamp()
    srd(60, 16, 256)
    e("s_lshl_b32 s%d, s%d, 1" % (sT, sB))
    e("s_add_u32 s%d, s%d, s%d" % (sT, sT, sHalf))
    e("s_lshl_b32 s%d, s%d, 2" % (sT2, sT))
    e("s_cmp_lg_u32 s%d, 0" % sW)
    e("s_cbranch_scc1 L_wait_done")
    e("v_mov_b32 v%d, 1" % vA1)
    e("v_mov_b32 v%d, 0" % vA2)
    e("v_cmp_eq_u32 vcc, 0, v%d" % vLane)
    e("s_and_saveexec_b64 s[100:101], vcc")
    e("buffer_atomic_add v%d, v%d, s[60:63], s%d offen sc1" % (vA1, vA2, sT2))
    e("s_mov_b32 s%d, 0" % sMask)
    lab("L_poll")
    e("buffer_load_dword v%d, v%d, s[60:63], s%d offen sc1" % (vA3, vA2, sT2))
    e("s_waitcnt vmcnt(0)")
    e("v_readfirstlane_b32 s%d, v%d" % (sT, vA3))
    e("s_add_u32 s%d, s%d, 1" % (sMask, sMask))
    e("s_cmp_ge_u32 s%d, 16" % sT)
    e("s_cbranch_scc1 L_poll_done")
    e("s_cmp_lt_u32 s%d, 200000" % sMask)
    e("s_cbranch_scc1 L_poll")
    lab("L_poll_done")
    e("s_mov_b64 exec, s[100:101]")
    lab("L_wait_done")
    e("s_barrier")
    stamp()
    srd(60, 14, 8 * 128 * 448 * 2)
    e("s_and_b32 s%d, s2, 15" % sT)
    e("s_mul_i32 s%d, s%d, 7" % (sT, sT))
    e("s_add_u32 s%d, s%d, s%d" % (sT, sT, sW))
    e("s_and_b32 s96, s2, 0xf0")
    e("s_mul_i32 s96, s96, %d" % (4 * 28 * 1024))
    e("v_and_b32 v%d, 15, v%d" % (vA1, vLane))
    e("v_mul_u32_u24 v%d, 896, v%d" % (vA1, vA1))
    e("v_lshrrev_b32 v%d, 4, v%d" % (vA2, vLane))
    e("v_lshl_add_u32 v%d, v%d, 3, v%d" % (vA1, vA2, vA1))
    for rep in range(2):
        if rep == 1:
            e("s_cmp_eq_u32 s%d, 3" % sW)
            e("s_cbranch_scc1 L_red_done")
            e("s_add_u32 s%d, s%d, 4" % (sT, sT))
        e("s_lshl_b32 s97, s%d, 10" % sT)
        e("s_add_u32 s97, s97, s96")
        for j in range(16):
            e("s_add_u32 s98, s97, %d" % (j * 4 * 28 * 1024))
            e("buffer_load_dwordx4 %s, v%d, s[%d:%d], s98 offen sc1" % (vr(ACC + 4 * j, 4), vA0, sWS, sWS + 3))
        e("s_mul_i32 s98, s%d, 2341" % sT)
        e("s_lshr_b32 s98, s98, 16")
        e("s_mul_i32 s99, s98, 28")
        e("s_sub_u32 s99, s%d, s99" % sT)
        e("s_lshl_b32 s%d, s%d, 7" % (sT2, sB))
        e("s_lshl_b32 s100, s%d, 6" % sHalf)
        e("s_add_u32 s%d, s%d, s100" % (sT2, sT2))
        e("s_and_b32 s100, s99, 3")
        e("s_lshl_b32 s100, s100, 4")
        e("s_add_u32 s%d, s%d, s100" % (sT2, sT2))
        e("s_mul_i32 s%d, s%d, 896" % (sT2, sT2))
        e("s_mul_i32 s100, s98, 224")
        e("s_add_u32 s%d, s%d, s100" % (sT2, sT2))
        e("s_lshr_b32 s100, s99, 2")
        e("s_lshl_b32 s100, s100, 5")
        e("s_add_u32 s%d, s%d, s100" % (sT2, sT2))
        for j in range(1, 16):
            e("s_waitcnt vmcnt(%d)" % (15 - j))
            for i in range(4):
                e("v_add_f32 v%d, v%d, v%d" % (ACC + i, ACC + i, ACC + 4 * j + i))
        e("v_cvt_pk_bf16_f32 v%d, v%d, v%d" % (vS, ACC, ACC + 1))
        e("v_cvt_pk_bf16_f32 v%d, v%d, v%d" % (vS + 1, ACC + 2, ACC + 3))
        e("buffer_store_dwordx2 %s, v%d, s[60:63], s%d offen" % (vr(vS, 2), vA1, sT2))
        e("s_nop 1")
    lab("L_red_done")
    e("s_waitcnt vmcnt(0)")
    stamp()
    if STAMPS:
        i = nstamp[0]; nstamp[0] += 2
        e("s_mov_b64 s[%d:%d], s[92:93]" % (64 + 2 * i, 65 + 2 * i))
        e("s_memrealtime s[%d:%d]" % (66 + 2 * i, 67 + 2 * i))
        e("s_waitcnt lgkmcnt(0)")
    stamp_flush()
    lab("L_main_end")
    e("s_endpgm")

def gen_reduce():
    L.append(".p2align 8")
    L.append(".globl reduce_kernel")
    L.append(".type reduce_kernel,@function")
    lab("reduce_kernel")
    e("s_cmp_ge_u32 s2, 448")
    e("s_cbranch_scc1 L_red_end")
    if STAMPS:
        e("s_memrealtime s[32:33]")
        e("s_waitcnt lgkmcnt(0)")
    e("s_load_dwordx2 s[4:5], s[0:1], 40")
    e("s_load_dwordx2 s[6:7], s[0:1], 56")
    e("v_lshrrev_b32 v1, 6, v0")
    e("v_and_b32 v2, 63, v0")
    e("s_and_b32 s20, s2, 7")
    e("v_readfirstlane_b32 s21, v1")
    e("s_lshr_b32 s22, s2, 3")
    e("s_cmp_ge_u32 s22, 28")
    e("s_cselect_b32 s23, 1, 0")
    e("s_mul_i32 s24, s23, 28")
    e("s_sub_u32 s24, s22, s24")
    e("s_waitcnt lgkmcnt(0)")
    srd(8, 4, 8 * 128 * 448 * 2)
    srd(12, 6, 256 * 4 * 28 * 1024)
    e("s_lshl_b32 s25, s20, 1")
    e("s_add_u32 s25, s25, s23")
    e("s_lshl_b32 s25, s25, 6")
    e("s_add_u32 s25, s25, s21")
    e("s_mul_i32 s25, s25, 28")
    e("s_add_u32 s25, s25, s24")
    e("s_lshl_b32 s25, s25, 10")
    e("v_lshlrev_b32 v3, 4, v2")
    e("s_nop 4")
    for h in range(16):
        e("s_add_u32 s26, s25, %d" % (h * 4 * 28 * 1024))
        e("buffer_load_dwordx4 v[%d:%d], v3, s[12:15], s26 offen" % (8 + 4 * h, 11 + 4 * h))
    e("s_and_b32 s27, s24, 3")
    e("s_lshr_b32 s28, s24, 2")
    e("s_lshl_b32 s29, s20, 7")
    e("s_lshl_b32 s30, s23, 6")
    e("s_add_u32 s29, s29, s30")
    e("s_lshl_b32 s30, s27, 4")
    e("s_add_u32 s29, s29, s30")
    e("s_mul_i32 s29, s29, 896")
    e("s_mul_i32 s30, s21, 224")
    e("s_add_u32 s29, s29, s30")
    e("s_lshl_b32 s30, s28, 5")
    e("s_add_u32 s29, s29, s30")
    e("v_and_b32 v4, 15, v2")
    e("v_mul_u32_u24 v4, 896, v4")
    e("v_lshrrev_b32 v5, 4, v2")
    e("v_lshl_add_u32 v4, v5, 3, v4")
    for h in range(1, 16):
        e("s_waitcnt vmcnt(%d)" % (15 - h))
        for i in range(4):
            e("v_add_f32 v%d, v%d, v%d" % (8 + i, 8 + i, 8 + 4 * h + i))
    e("v_cvt_pk_bf16_f32 v8, v8, v9")
    e("v_cvt_pk_bf16_f32 v9, v10, v11")
    e("buffer_store_dwordx2 v[8:9], v4, s[8:11], s29 offen")
    e("s_waitcnt vmcnt(0)")
    if STAMPS:
        e("s_memrealtime s[34:35]")
        e("s_waitcnt lgkmcnt(0)")
        e("s_mov_b32 s14, 0x10000000")
        e("s_lshl_b32 s26, s2, 2")
        e("s_add_u32 s26, s26, s21")
        e("s_lshl_b32 s26, s26, 4")
        e("s_add_u32 s26, s26, %d" % (129 << 20))
        e("v_mov_b32 v8, s32")
        e("v_mov_b32 v9, s33")
        e("v_mov_b32 v10, s34")
        e("v_mov_b32 v11, s35")
        e("v_mov_b32 v3, 0")
        e("buffer_store_dwordx4 v[8:11], v3, s[12:15], s26 offen")
    lab("L_red_end")
    e("s_endpgm")

HEADER = """; Kernarg layout for this problem (64 bytes, ptrs only, base s[0:1]):
;   offset   0: d_in[0] x  shape=(8, 128, 448) dtype=bfloat16
;   offset   8: d_in[1] k_cache  shape=(8, 16, 512, 256) dtype=bfloat16
;   offset  16: d_in[2] v_cache  shape=(8, 16, 512, 256) dtype=bfloat16
;   offset  24: d_in[3] wq  shape=(448, 4096) dtype=bfloat16
;   offset  32: d_in[4] wo  shape=(4096, 448) dtype=bfloat16
;   offset  40: d_out     shape=(8, 128, 448) dtype=bfloat16
;   offset  48: d_debug   256 bytes
;   offset  56: d_ws      268435456 bytes workspace
; generated by gen.py
; @launch grid=(256,1,1) block=(256,1,1) lds=%d
.amdgcn_target "amdgcn-amd-amdhsa--gfx950"
.text
.globl %s_kernel
.p2align 8
.type %s_kernel,@function
""" % (LDS_TOTAL, NAME, NAME)

FOOTER = """.section .rodata,"a"
.p2align 6
.amdhsa_kernel %s_kernel
  .amdhsa_next_free_vgpr 384
  .amdhsa_next_free_sgpr 102
  .amdhsa_accum_offset 256
  .amdhsa_group_segment_fixed_size 0
  .amdhsa_kernarg_size 64
  .amdhsa_user_sgpr_count 2
  .amdhsa_user_sgpr_kernarg_segment_ptr 1
  .amdhsa_system_sgpr_workgroup_id_x 1
.end_amdhsa_kernel
""" % NAME

gen_main()
with open(OUT, "w") as f:
    f.write(HEADER + "\n".join(L) + "\n" + FOOTER)
print("wrote", OUT, len(L), "lines")
```

```python
import struct, sys, os
KVPOL = os.environ.get("KVPOL", " nt")
STPOL = os.environ.get("STPOL", "")

OUT = sys.argv[1] if len(sys.argv) > 1 else "standalone__mha_block_cached__near_ridge.s"
NAME = "standalone__mha_block_cached__near_ridge"

L = []
def e(s): L.append("    " + s)
def lab(s): L.append(s + ":")
def cm(s): L.append("    ; " + s)

def f32bits(x): return struct.unpack("<I", struct.pack("<f", x))[0]

RING = 24576
SH = 4 * RING
LDS_TOTAL = 163840

sX, sK, sV, sWQ, sWO, sWS = 20, 24, 28, 32, 36, 40
sW = 44
sRing = 45
sXb, sWQb, sKb, sVb, sWOb, sPb = 46, 47, 48, 49, 50, 51
sT = 52
sC = 53
sB, sH, sHalf = 54, 55, 56
sT2 = 57
sMask = 58
sKc = [96, 97, 98, 99]

vLane = 1
vQ32 = 2
vHf = 3
vT0, vT1, vT2, vT3 = 4, 5, 6, 7
vXK = [8, 9, 10, 11]
vKA = [12, 13, 14, 15]
vTR = [16, 17]
vWOr = 18
vDX = [19, 20]
vDWQ = 21
vDK = [22, 23]
vDV = 24
vDWO = [25, 26, 27, 28, 29, 30, 31]
vA0, vA1, vA2, vA3, vA4, vA5, vA6, vA7 = 32, 33, 34, 35, 36, 37, 38, 39
vS = 40
FB = 64
ACC = 128

def vr(b, n): return "v[%d:%d]" % (b, b + n - 1)
def ar(b, n): return "a[%d:%d]" % (b, b + n - 1)

class Stream:
    def __init__(self):
        self.chunks = []
        self.vm_issued = 0
        self.last_instr = {}
        self.pending = []
        self.next_chunk = 0
        self.pos = 0
    def add(self, kind, idx, size):
        if self.pos + size > RING:
            self.pos = 0
        self.chunks.append(dict(kind=kind, idx=idx, size=size, off=self.pos))
        self.pos += size
    def dep(self, c):
        a = self.chunks[c]
        for p in range(c - 1, -1, -1):
            b = self.chunks[p]
            if a['off'] < b['off'] + b['size'] and b['off'] < a['off'] + a['size']:
                return p
        return -1
    def release(self, consumed):
        while self.next_chunk < len(self.chunks) and self.dep(self.next_chunk) <= consumed:
            c = self.next_chunk
            n = self.chunks[c]['size'] // 1024
            for i in range(n):
                self.pending.append((c, i))
            self.next_chunk += 1
    def emit_one(self):
        if not self.pending:
            return False
        c, n = self.pending.pop(0)
        ch = self.chunks[c]
        emit_dma(ch['kind'], ch['idx'], n, ch['off'] + n * 1024)
        self.vm_issued += 1
        self.last_instr[c] = self.vm_issued
        return True
    def emit_all(self):
        while self.emit_one():
            pass
    def wait(self, c):
        while any(p[0] <= c for p in self.pending):
            self.emit_one()
        n = self.vm_issued - self.last_instr[c]
        e("s_waitcnt vmcnt(%d)" % n)

def emit_dma(kind, idx, n, ringoff):
    e("s_add_u32 m0, s%d, %d" % (sRing, ringoff))
    if kind == 'wq':
        e("s_add_u32 s%d, s%d, %d" % (sT, sWQb, (32 * idx + 8 * n) * 8192))
        e("buffer_load_dwordx4 v%d, s[%d:%d], s%d offen lds" % (vDWQ, sWQ, sWQ + 3, sT))
    elif kind == 'k':
        kt, db = idx
        e("s_add_u32 s%d, s%d, %d" % (sT, sKc[db], (32 * kt + 8 * n) * 512))
        e("buffer_load_dwordx4 v%d, s[%d:%d], s%d offen%s lds" % (vDK[n & 1], sK, sK + 3, sT, KVPOL))
    elif kind == 'v':
        e("s_add_u32 s%d, s%d, %d" % (sT, sVb, (32 * idx + 8 * n) * 512))
        e("buffer_load_dwordx4 v%d, s[%d:%d], s%d offen%s lds" % (vDV, sV, sV + 3, sT, KVPOL))
    elif kind == 'wo':
        e("s_add_u32 s%d, s%d, %d" % (sT, sWOb, (32 * idx) * 896))
        e("buffer_load_dwordx4 v%d, s[%d:%d], s%d offen lds" % (vDWO[n], sWO, sWO + 3, sT))
    else:
        raise ValueError(kind)

def srd(s, lo, nbytes):
    e("s_mov_b32 s%d, s%d" % (s, lo))
    e("s_and_b32 s%d, s%d, 0xffff" % (s + 1, lo + 1))
    e("s_mov_b32 s%d, %d" % (s + 2, nbytes))
    e("s_mov_b32 s%d, 0x00020000" % (s + 3))

import os
STAMPS = bool(os.environ.get("GEN_STAMPS"))
nstamp = [0]
def stamp():
    if not STAMPS: return
    i = nstamp[0]; nstamp[0] += 1
    e("s_memtime s[%d:%d]" % (64 + 2 * i, 65 + 2 * i))
    e("s_waitcnt lgkmcnt(0)")
def stamp_flush():
    if not STAMPS: return
    e("s_mov_b32 s%d, 0x10000000" % (sWS + 2))
    e("s_lshl_b32 s%d, s2, 2" % sT)
    e("s_add_u32 s%d, s%d, s%d" % (sT, sT, sW))
    e("s_lshl_b32 s%d, s%d, 8" % (sT, sT))
    e("s_add_u32 s%d, s%d, %d" % (sT, sT, 128 << 20))
    e("v_mov_b32 v%d, 0" % vA1)
    for i in range(nstamp[0]):
        e("v_mov_b32 v%d, s%d" % (vS, 64 + 2 * i))
        e("v_mov_b32 v%d, s%d" % (vS + 1, 65 + 2 * i))
        e("buffer_store_dwordx2 %s, v%d, s[%d:%d], s%d offen offset:%d" % (vr(vS, 2), vA1, sWS, sWS + 3, sT, 8 * i))
        e("s_nop 2")

def barrier():
    e("s_waitcnt lgkmcnt(0)")
    e("s_barrier")

def gen_main():
    lab(NAME + "_kernel")
    e("s_cmp_ge_u32 s2, 256")
    e("s_cbranch_scc1 L_main_end")
    stamp()
    if STAMPS:
        e("s_memrealtime s[92:93]")
        e("s_waitcnt lgkmcnt(0)")
    e("s_load_dwordx8 s[4:11], s[0:1], 0")
    e("s_load_dwordx8 s[12:19], s[0:1], 32")
    e("v_lshrrev_b32 v%d, 6, v0" % vT0)
    e("v_and_b32 v%d, 63, v0" % vLane)
    e("s_lshr_b32 s%d, s2, 5" % sB)
    e("v_readfirstlane_b32 s%d, v%d" % (sW, vT0))
    e("s_and_b32 s%d, s2, 7" % sH)
    e("s_lshl_b32 s%d, s%d, 1" % (sH, sH))
    e("s_lshr_b32 s%d, s2, 3" % sHalf)
    e("s_and_b32 s%d, s%d, 1" % (sT, sHalf))
    e("s_add_u32 s%d, s%d, s%d" % (sH, sH, sT))
    e("s_lshr_b32 s%d, s2, 4" % sHalf)
    e("s_and_b32 s%d, s%d, 1" % (sHalf, sHalf))
    e("s_mov_b32 s%d, 0x%08x" % (sC, f32bits(1.4426950408889634 / 16.0)))
    e("v_and_b32 v%d, 31, v%d" % (vQ32, vLane))
    e("v_lshrrev_b32 v%d, 5, v%d" % (vHf, vLane))
    e("s_mul_i32 s%d, s%d, %d" % (sRing, sW, RING))
    e("s_waitcnt lgkmcnt(0)")
    srd(sX, 4, 8 * 128 * 448 * 2)
    srd(sK, 6, 8 * 16 * 512 * 256 * 2)
    srd(sV, 8, 8 * 16 * 512 * 256 * 2)
    srd(sWQ, 10, 448 * 4096 * 2)
    srd(sWO, 12, 4096 * 448 * 2)
    srd(sWS, 18, 256 * 4 * 28 * 1024)
    if os.environ.get("NOSHARE"):
        e("s_cmp_eq_u32 s%d, 1" % sHalf)
        for i in range(2):
            e("s_cselect_b32 s60, s%d, s%d" % (sV + i, sK + i))
            e("s_cselect_b32 s61, s%d, s%d" % (sK + i, sV + i))
            e("s_mov_b32 s%d, s60" % (sK + i))
            e("s_mov_b32 s%d, s61" % (sV + i))
    e("s_lshl_b32 s%d, s%d, 1" % (sT, sB))
    e("s_add_u32 s%d, s%d, s%d" % (sT, sT, sHalf))
    e("s_mul_i32 s%d, s%d, %d" % (sXb, sT, 64 * 896))
    e("s_lshl_b32 s%d, s%d, 9" % (sWQb, sH))
    e("s_lshl_b32 s%d, s%d, 7" % (sT, sW))
    e("s_add_u32 s%d, s%d, s%d" % (sWQb, sWQb, sT))
    e("s_lshl_b32 s%d, s%d, 4" % (sT, sB))
    e("s_add_u32 s%d, s%d, s%d" % (sT, sT, sH))
    e("s_lshl_b32 s%d, s%d, 18" % (sT, sT))
    e("s_lshl_b32 s%d, s%d, 16" % (sT2, sW))
    e("s_add_u32 s%d, s%d, s%d" % (sKb, sT, sT2))
    e("s_lshl_b32 s%d, s%d, 7" % (sT2, sW))
    e("s_add_u32 s%d, s%d, s%d" % (sVb, sT, sT2))
    for db in range(4):
        e("s_add_u32 s%d, s%d, %d" % (sT2, sW, db))
        e("s_and_b32 s%d, s%d, 3" % (sT2, sT2))
        e("s_lshl_b32 s%d, s%d, 7" % (sT2, sT2))
        e("s_add_u32 s%d, s%d, s%d" % (sKc[db], sKb, sT2))
    e("s_mul_i32 s%d, s%d, %d" % (sWOb, sH, 256 * 896))
    e("s_mul_i32 s%d, s%d, 224" % (sT, sW))
    e("s_add_u32 s%d, s%d, s%d" % (sWOb, sWOb, sT))
    e("s_lshl_b32 s%d, s2, 2" % sT)
    e("s_add_u32 s%d, s%d, s%d" % (sT, sT, sW))
    e("s_mul_i32 s%d, s%d, %d" % (sPb, sT, 14 * 1024))

    cm("DMA voffsets")
    r8, p8 = vT0, vT1
    e("v_lshrrev_b32 v%d, 3, v%d" % (r8, vLane))
    e("v_and_b32 v%d, 7, v%d" % (p8, vLane))
    e("v_lshrrev_b32 v%d, 1, v%d" % (vT2, r8))
    e("v_xor_b32 v%d, v%d, v%d" % (vT3, p8, vT2))
    e("v_lshlrev_b32 v%d, 4, v%d" % (vA0, vT3))
    e("v_xor_b32 v%d, 64, v%d" % (vA1, vA0))
    e("v_mul_u32_u24 v%d, 896, v%d" % (vA2, r8))
    e("v_add_u32 v%d, v%d, v%d" % (vDX[0], vA2, vA0))
    e("v_add_u32 v%d, v%d, v%d" % (vDX[1], vA2, vA1))
    e("v_lshlrev_b32 v%d, 9, v%d" % (vA2, r8))
    e("v_add_u32 v%d, v%d, v%d" % (vDK[0], vA2, vA0))
    e("v_add_u32 v%d, v%d, v%d" % (vDK[1], vA2, vA1))
    e("v_and_b32 v%d, 1, v%d" % (vT3, vT2))
    e("v_lshlrev_b32 v%d, 2, v%d" % (vT3, vT3))
    e("v_xor_b32 v%d, v%d, v%d" % (vT3, p8, vT3))
    e("v_lshlrev_b32 v%d, 4, v%d" % (vT3, vT3))
    e("v_add_u32 v%d, v%d, v%d" % (vDV, vA2, vT3))
    e("v_lshlrev_b32 v%d, 13, v%d" % (vA2, r8))
    e("v_add_u32 v%d, v%d, v%d" % (vDWQ, vA2, vT3))
    for n in range(7):
        e("v_add_u32 v%d, %d, v%d" % (vT0, 64 * n, vLane))
        e("v_mul_u32_u24 v%d, 4682, v%d" % (vT1, vT0))
        e("v_lshrrev_b32 v%d, 16, v%d" % (vT1, vT1))
        e("v_mul_u32_u24 v%d, 14, v%d" % (vT2, vT1))
        e("v_sub_u32 v%d, v%d, v%d" % (vT2, vT0, vT2))
        e("v_mul_u32_u24 v%d, 896, v%d" % (vT1, vT1))
        e("v_lshlrev_b32 v%d, 4, v%d" % (vT2, vT2))
        e("v_add_u32 v%d, v%d, v%d" % (vDWO[n], vT1, vT2))
    e("s_nop 4")

    st = Stream()
    for j in range(14): st.add('wq', j, 4096)
    for kt in range(4):
        for db in range(4): st.add('k', (kt, db), 4096)
    for j in range(16): st.add('v', j, 4096)
    for t in range(8): st.add('wo', t, 7168)
    C_WQ, C_K, C_V, C_WO = 0, 14, 30, 46

    if not os.environ.get("NOWARM"):
        cm("L2 warm-up prefetch")
        e("s_lshl_b32 s60, s%d, 1" % sB)
        e("s_add_u32 s60, s60, s%d" % sHalf)
        e("s_and_b32 s61, s%d, 1" % sW)
        e("s_mul_i32 s62, s60, 28")
        e("s_mul_i32 s63, s61, 14")
        e("s_add_u32 s62, s62, s63")
        e("s_lshl_b32 s62, s62, 13")
        e("s_lshl_b32 s63, s%d, 9" % sH)
        e("s_add_u32 s62, s62, s63")
        e("s_lshl_b32 s63, s%d, 8" % sH)
        e("s_lshl_b32 s100, s60, 4")
        e("s_add_u32 s63, s63, s100")
        e("s_mul_i32 s63, s63, 896")
        e("s_mul_i32 s100, s61, 7168")
        e("s_add_u32 s63, s63, s100")
        e("v_lshlrev_b32 v%d, 13, v%d" % (vT0, vHf))
        e("v_lshl_add_u32 v%d, v%d, 4, v%d" % (vT0, vQ32, vT0))
        e("v_lshlrev_b32 v%d, 4, v%d" % (vT1, vLane))
        e("s_cmp_ge_u32 s%d, 2" % sW)
        e("s_cbranch_scc1 L_warm_wo")
        for k in range(7):
            e("s_add_u32 s100, s62, %d" % (k * 2 * 8192))
            e("buffer_load_dwordx4 v[%d:%d], v%d, s[%d:%d], s100 offen" % (ACC + 4 * k, ACC + 4 * k + 3, vT0, sWQ, sWQ + 3))
        e("s_branch L_warm_done")
        lab("L_warm_wo")
        for k in range(7):
            e("s_add_u32 s100, s63, %d" % (k * 1024))
            e("buffer_load_dwordx4 v[%d:%d], v%d, s[%d:%d], s100 offen" % (ACC + 4 * k, ACC + 4 * k + 3, vT1, sWO, sWO + 3))
        lab("L_warm_done")
        st.vm_issued += 7
    cm("x tile DMA")
    e("s_mul_i32 s%d, s%d, 14" % (sT2, sW))
    for k in range(14):
        e("s_add_u32 s60, s%d, %d" % (sT2, k))
        e("s_lshr_b32 s61, s60, 3")
        e("s_and_b32 s62, s60, 7")
        e("s_lshl_b32 s63, s60, 10")
        e("s_add_u32 m0, s63, %d" % SH)
        e("s_mul_i32 s63, s62, %d" % (8 * 896))
        e("s_lshl_b32 s61, s61, 7")
        e("s_add_u32 s63, s63, s61")
        e("s_add_u32 s63, s63, s%d" % sXb)
        e("buffer_load_dwordx4 v%d, s[%d:%d], s63 offen lds" % (vDX[k & 1], sX, sX + 3))
        st.vm_issued += 1
    x_last = st.vm_issued
    st.release(-1)
    st.emit_all()

    cm("LDS read address regs")
    e("v_lshrrev_b32 v%d, 1, v%d" % (vT0, vQ32))
    e("v_and_b32 v%d, 7, v%d" % (vT0, vT0))
    e("v_lshlrev_b32 v%d, 7, v%d" % (vT1, vQ32))
    for k in range(4):
        e("v_add_u32 v%d, %d, v%d" % (vT2, 2 * k, vHf))
        e("v_xor_b32 v%d, v%d, v%d" % (vT2, vT2, vT0))
        e("v_lshl_add_u32 v%d, v%d, 4, v%d" % (vT2, vT2, vT1))
        e("v_add_u32 v%d, %d, v%d" % (vXK[k], SH, vT2))
        e("v_add_u32 v%d, s%d, v%d" % (vKA[k], sRing, vT2))
    e("v_lshrrev_b32 v%d, 4, v%d" % (vT0, vLane))
    e("v_and_b32 v%d, 1, v%d" % (vT0, vT0))
    e("v_and_b32 v%d, 15, v%d" % (vT1, vLane))
    e("v_lshrrev_b32 v%d, 2, v%d" % (vT2, vT1))
    e("v_and_b32 v%d, 3, v%d" % (vT3, vT1))
    e("v_lshl_add_u32 v%d, v%d, 3, v%d" % (vA0, vHf, vT2))
    e("v_lshlrev_b32 v%d, 7, v%d" % (vA0, vA0))
    e("v_lshrrev_b32 v%d, 1, v%d" % (vA1, vT3))
    e("v_lshl_add_u32 v%d, v%d, 1, v%d" % (vA1, vT0, vA1))
    e("v_lshrrev_b32 v%d, 1, v%d" % (vA2, vT2))
    e("v_lshlrev_b32 v%d, 2, v%d" % (vA2, vA2))
    e("v_xor_b32 v%d, v%d, v%d" % (vA1, vA1, vA2))
    e("v_lshl_add_u32 v%d, v%d, 4, v%d" % (vA0, vA1, vA0))
    e("v_and_b32 v%d, 1, v%d" % (vA1, vT3))
    e("v_lshl_add_u32 v%d, v%d, 3, v%d" % (vA0, vA1, vA0))
    e("v_add_u32 v%d, s%d, v%d" % (vTR[0], sRing, vA0))
    e("v_xor_b32 v%d, 64, v%d" % (vTR[1], vTR[0]))
    e("v_lshrrev_b32 v%d, 4, v%d" % (vA0, vLane))
    e("v_lshl_add_u32 v%d, v%d, 2, v%d" % (vA0, vA0, vT2))
    e("v_mul_u32_u24 v%d, 224, v%d" % (vA0, vA0))
    e("v_lshl_add_u32 v%d, v%d, 3, v%d" % (vA0, vT3, vA0))
    e("v_add_u32 v%d, s%d, v%d" % (vWOr, sRing, vA0))

    e("s_waitcnt vmcnt(%d)" % (st.vm_issued - x_last))
    e("s_barrier")

    stamp()
    cm("==== phase 1: Q^T = wq^T x^T ====")
    def p1_reads(j, buf):
        base = FB + buf * 32
        off = st.chunks[C_WQ + j]['off']
        for ks in range(2):
            for D in range(2):
                for a in range(2):
                    r = base + (ks * 2 + D) * 4 + a * 2
                    e("ds_read_b64_tr_b16 %s, v%d offset:%d" % (vr(r, 2), vTR[D], off + (16 * ks + 4 * a) * 128))
            s = 2 * j + ks
            for t in range(2):
                r = base + 16 + (ks * 2 + t) * 4
                e("ds_read_b128 %s, v%d offset:%d" % (vr(r, 4), vXK[s & 3], (s >> 2) * 8192 + t * 4096))
    def p1_mfma(j, buf, half):
        base = FB + buf * 32
        ks = half
        for D in range(2):
            for t in range(2):
                acc = ACC + (D * 2 + t) * 16
                c = "0" if (j == 0 and ks == 0) else vr(acc, 16)
                e("v_mfma_f32_32x32x16_bf16 %s, %s, %s, %s" % (vr(acc, 16), vr(base + (ks * 2 + D) * 4, 4), vr(base + 16 + (ks * 2 + t) * 4, 4), c))
                if (D * 2 + t) % 2 == 1:
                    st.emit_one()
    st.wait(C_WQ + 0)
    p1_reads(0, 0)
    for j in range(14):
        e("s_waitcnt lgkmcnt(0)")
        st.release(C_WQ + j)
        p1_mfma(j, j & 1, 0)
        if j + 1 < 14:
            st.wait(C_WQ + j + 1)
            p1_reads(j + 1, (j + 1) & 1)
        p1_mfma(j, j & 1, 1)
    st.emit_all()
    stamp()
    e("s_barrier")
    e("s_nop 15")
    e("s_lshr_b32 s%d, s%d, 1" % (sT, sW))
    e("s_lshl_b32 s%d, s%d, 8" % (sT, sT))
    e("s_add_u32 s%d, s%d, %d" % (sT, sT, SH))
    e("s_and_b32 s%d, s%d, 1" % (sT2, sW))
    e("s_lshl_b32 s%d, s%d, 3" % (sT2, sT2))
    e("v_and_b32 v%d, 15, v%d" % (vT0, vQ32))
    e("v_xor_b32 v%d, s%d, v%d" % (vT0, sT2, vT0))
    e("v_lshlrev_b32 v%d, 4, v%d" % (vT0, vT0))
    e("v_lshl_add_u32 v%d, v%d, 9, v%d" % (vT0, vQ32, vT0))
    e("v_lshl_add_u32 v%d, v%d, 3, v%d" % (vT0, vHf, vT0))
    e("v_add_u32 v%d, s%d, v%d" % (vA0, sT, vT0))
    for D in range(2):
        for t in range(2):
            acc = ACC + (D * 2 + t) * 16
            for g in range(4):
                e("v_cvt_pk_bf16_f32 v%d, v%d, v%d" % (vS + 0, acc + 4 * g, acc + 4 * g + 1))
                e("v_cvt_pk_bf16_f32 v%d, v%d, v%d" % (vS + 1, acc + 4 * g + 2, acc + 4 * g + 3))
                e("v_xor_b32 v%d, %d, v%d" % (vA1, (4 * D + g) << 4, vA0))
                e("ds_write_b64 v%d, %s offset:%d" % (vA1, vr(vS, 2), t * 16384))
    barrier()
    e("v_and_b32 v%d, 15, v%d" % (vT0, vQ32))
    e("v_xor_b32 v%d, v%d, v%d" % (vT0, vHf, vT0))
    e("v_lshlrev_b32 v%d, 4, v%d" % (vT0, vT0))
    e("v_lshl_add_u32 v%d, v%d, 9, v%d" % (vT0, vQ32, vT0))
    e("v_add_u32 v%d, %d, v%d" % (vA0, SH, vT0))
    for db in range(4):
        e("s_add_u32 s%d, s%d, %d" % (sT2, sW, db))
        e("s_and_b32 s%d, s%d, 3" % (sT2, sT2))
        e("s_lshl_b32 s%d, s%d, 7" % (sT2, sT2))
        e("v_xor_b32 v%d, s%d, v%d" % (vA1, sT2, vA0))
        for k in range(4):
            sidx = 4 * db + k
            e("v_xor_b32 v%d, %d, v%d" % (vA2, k << 5, vA1))
            for t in range(2):
                e("ds_read_b128 %s, v%d offset:%d" % (ar((sidx * 2 + t) * 4, 4), vA2, t * 16384))
        e("s_waitcnt lgkmcnt(0)")

    stamp()
    cm("==== phase 2 ====")
    def p2_reads(c, buf):
        base = FB + buf * 32
        off = st.chunks[C_K + c]['off']
        for k in range(4):
            e("ds_read_b128 %s, v%d offset:%d" % (vr(base + 4 * k, 4), vKA[k], off))
    def p2_mfma(c, buf, half):
        base = FB + buf * 32
        kt, db = divmod(c, 4)
        for k in range(2 * half, 2 * half + 2):
            s = 4 * db + k
            for t in range(2):
                acc = ACC + (kt * 2 + t) * 16
                cc = "0" if s == 0 else vr(acc, 16)
                e("v_mfma_f32_32x32x16_bf16 %s, %s, %s, %s" % (vr(acc, 16), vr(base + 4 * k, 4), ar((s * 2 + t) * 4, 4), cc))
            st.emit_one()
    st.wait(C_K + 0)
    p2_reads(0, 0)
    for c in range(16):
        e("s_waitcnt lgkmcnt(0)")
        st.release(C_K + c)
        p2_mfma(c, c & 1, 0)
        if c + 1 < 16:
            st.wait(C_K + c + 1)
            p2_reads(c + 1, (c + 1) & 1)
        p2_mfma(c, c & 1, 1)
    st.emit_all()
    e("s_nop 15")

    stamp()
    cm("==== phase 3: softmax ====")
    e("s_mov_b32 s%d, 0xffff0000" % sMask)
    vM = [vS + 0, vS + 1]
    def accreg(kt, t, i): return ACC + (kt * 2 + t) * 16 + i
    for t in range(2):
        for kt in range(4):
            for i in range(0, 16, 2):
                a0, a1 = accreg(kt, t, i), accreg(kt, t, i + 1)
                e("v_cvt_pk_bf16_f32 v%d, v%d, v%d" % (a1, a0, a1))
                e("v_lshlrev_b32 v%d, 16, v%d" % (a0, a1))
                e("v_and_b32 v%d, s%d, v%d" % (a1, sMask, a1))
    mreg = [vS + 0, vS + 2]
    lreg = [vS + 1, vS + 3]
    tmpm = [vS + 4, vS + 5]
    for t in range(2):
        vals = [accreg(kt, t, i) for kt in range(4) for i in range(16)]
        e("v_max_f32 v%d, v%d, v%d" % (mreg[t], vals[0], vals[1]))
        e("v_max_f32 v%d, v%d, v%d" % (tmpm[t], vals[2], vals[3]))
    for idx in range(4, 64, 4):
        for t in range(2):
            vals = [accreg(kt, t, i) for kt in range(4) for i in range(16)]
            e("v_max3_f32 v%d, v%d, v%d, v%d" % (mreg[t], mreg[t], vals[idx], vals[idx + 1]))
            e("v_max3_f32 v%d, v%d, v%d, v%d" % (tmpm[t], tmpm[t], vals[idx + 2], vals[idx + 3]))
    for t in range(2):
        e("v_max_f32 v%d, v%d, v%d" % (mreg[t], mreg[t], tmpm[t]))
    nmc = [vS + 6, vS + 7]
    for t in range(2):
        e("v_mul_f32 v%d, s%d, v%d" % (nmc[t], sC, mreg[t]))
    for kt in range(4):
        for i in range(16):
            for t in range(2):
                a = accreg(kt, t, i)
                e("v_fma_f32 v%d, v%d, s%d, -v%d" % (a, a, sC, nmc[t]))
            for t in range(2):
                a = accreg(kt, t, i)
                e("v_exp_f32 v%d, v%d" % (a, a))
    e("s_nop 0")
    sp = [[vS + 8, vS + 9], [vS + 10, vS + 11]]
    for t in range(2):
        vals = [accreg(kt, t, i) for kt in range(4) for i in range(16)]
        e("v_add_f32 v%d, v%d, v%d" % (sp[t][0], vals[0], vals[1]))
        e("v_add_f32 v%d, v%d, v%d" % (sp[t][1], vals[2], vals[3]))
    for idx in range(4, 64, 2):
        for t in range(2):
            vals = [accreg(kt, t, i) for kt in range(4) for i in range(16)]
            e("v_add_f32 v%d, v%d, v%d" % (sp[t][0], sp[t][0], vals[idx]))
            e("v_add_f32 v%d, v%d, v%d" % (sp[t][1], sp[t][1], vals[idx + 1]))
    for t in range(2):
        e("v_add_f32 v%d, v%d, v%d" % (lreg[t], sp[t][0], sp[t][1]))
    e("s_lshl_b32 s%d, s%d, 10" % (sT, sW))
    e("s_add_u32 s%d, s%d, %d" % (sT, sT, SH))
    e("v_lshlrev_b32 v%d, 3, v%d" % (vT0, vQ32))
    e("v_lshl_add_u32 v%d, v%d, 9, v%d" % (vT1, vHf, vT0))
    e("v_add_u32 v%d, s%d, v%d" % (vA0, sT, vT1))
    e("v_add_u32 v%d, %d, v%d" % (vA1, SH, vT0))
    for t in range(2):
        e("ds_write_b64 v%d, %s offset:%d" % (vA0, vr(mreg[t], 2), t * 256))
    barrier()
    ML = FB
    for t in range(2):
        for k in range(8):
            e("ds_read_b64 %s, v%d offset:%d" % (vr(ML + (t * 8 + k) * 2, 2), vA1, k * 512 + t * 256))
        e("s_waitcnt lgkmcnt(0)")
    barrier()
    fac = [vS + 12, vS + 13]
    for t in range(2):
        mm = vS + 14 + t
        ms = [ML + (t * 8 + k) * 2 for k in range(8)]
        e("v_max3_f32 v%d, v%d, v%d, v%d" % (mm, ms[0], ms[1], ms[2]))
        e("v_max3_f32 v%d, v%d, v%d, v%d" % (mm, mm, ms[3], ms[4]))
        e("v_max3_f32 v%d, v%d, v%d, v%d" % (mm, mm, ms[5], ms[6]))
        e("v_max_f32 v%d, v%d, v%d" % (mm, mm, ms[7]))
        for k in range(8):
            e("v_sub_f32 v%d, v%d, v%d" % (ms[k], ms[k], mm))
            e("v_mul_f32 v%d, s%d, v%d" % (ms[k], sC, ms[k]))
            e("v_exp_f32 v%d, v%d" % (ms[k], ms[k]))
        e("s_nop 0")
        lg = vS + 16 + t
        e("v_mul_f32 v%d, v%d, v%d" % (lg, ms[0], ms[0] + 1))
        for k in range(1, 8):
            e("v_fmac_f32 v%d, v%d, v%d" % (lg, ms[k], ms[k] + 1))
        e("v_rcp_f32 v%d, v%d" % (lg, lg))
        e("v_sub_f32 v%d, v%d, v%d" % (fac[t], mreg[t], mm))
        e("v_mul_f32 v%d, s%d, v%d" % (fac[t], sC, fac[t]))
        e("v_exp_f32 v%d, v%d" % (fac[t], fac[t]))
        e("s_nop 0")
        e("v_mul_f32 v%d, v%d, v%d" % (fac[t], fac[t], lg))
    e("s_lshl_b32 s%d, s%d, 8" % (sT, sW))
    e("s_add_u32 s%d, s%d, %d" % (sT, sT, SH))
    e("v_and_b32 v%d, 15, v%d" % (vT0, vQ32))
    e("v_lshlrev_b32 v%d, 4, v%d" % (vT0, vT0))
    e("v_lshl_add_u32 v%d, v%d, 10, v%d" % (vT0, vQ32, vT0))
    e("v_lshl_add_u32 v%d, v%d, 3, v%d" % (vT1, vHf, vT0))
    e("v_add_u32 v%d, s%d, v%d" % (vA0, sT, vT1))
    for kt in range(4):
        for g in range(4):
            e("v_xor_b32 v%d, %d, v%d" % (vA1, (4 * kt + g) << 4, vA0))
            for t in range(2):
                a = accreg(kt, t, 4 * g)
                for i in range(4):
                    e("v_mul_f32 v%d, v%d, v%d" % (a + i, a + i, fac[t]))
                pk = vS + 18 + 2 * t
                e("v_cvt_pk_bf16_f32 v%d, v%d, v%d" % (pk, a, a + 1))
                e("v_cvt_pk_bf16_f32 v%d, v%d, v%d" % (pk + 1, a + 2, a + 3))
                e("ds_write_b64 v%d, %s offset:%d" % (vA1, vr(pk, 2), t * 32768))
    vPR = [vS + 0, vS + 1, vS + 2, vS + 3, vS + 4, vS + 5, vS + 6, vS + 7]
    e("v_and_b32 v%d, 15, v%d" % (vT0, vQ32))
    e("v_xor_b32 v%d, v%d, v%d" % (vT0, vHf, vT0))
    e("v_lshlrev_b32 v%d, 4, v%d" % (vT0, vT0))
    e("v_lshl_add_u32 v%d, v%d, 10, v%d" % (vT0, vQ32, vT0))
    e("v_add_u32 v%d, %d, v%d" % (vA2, SH, vT0))
    e("s_waitcnt lgkmcnt(0)")
    for k in range(8):
        e("v_xor_b32 v%d, %d, v%d" % (vPR[k], (2 * k) << 4, vA2))
    e("s_barrier")

    stamp()
    cm("==== phase 4 ====")
    def p4_reads(j, buf):
        base = FB + buf * 32
        off = st.chunks[C_V + j]['off']
        for ks in range(2):
            for D in range(2):
                for a in range(2):
                    r = base + (ks * 2 + D) * 4 + a * 2
                    e("ds_read_b64_tr_b16 %s, v%d offset:%d" % (vr(r, 2), vTR[D], off + (16 * ks + 4 * a) * 128))
            s = 2 * j + ks
            for t in range(2):
                r = base + 16 + (ks * 2 + t) * 4
                e("ds_read_b128 %s, v%d offset:%d" % (vr(r, 4), vPR[s & 7], (s >> 3) * 256 + t * 32768))
    def p4_mfma(j, buf, half):
        base = FB + buf * 32
        ks = half
        for D in range(2):
            for t in range(2):
                acc = ACC + (D * 2 + t) * 16
                c = "0" if (j == 0 and ks == 0) else vr(acc, 16)
                e("v_mfma_f32_32x32x16_bf16 %s, %s, %s, %s" % (vr(acc, 16), vr(base + (ks * 2 + D) * 4, 4), vr(base + 16 + (ks * 2 + t) * 4, 4), c))
                if (D * 2 + t) % 2 == 1:
                    st.emit_one()
    st.wait(C_V + 0)
    p4_reads(0, 0)
    for j in range(16):
        e("s_waitcnt lgkmcnt(0)")
        st.release(C_V + j)
        p4_mfma(j, j & 1, 0)
        if j + 1 < 16:
            st.wait(C_V + j + 1)
            p4_reads(j + 1, (j + 1) & 1)
        p4_mfma(j, j & 1, 1)
    st.emit_all()
    stamp()
    e("s_barrier")
    e("s_nop 15")
    e("s_lshr_b32 s%d, s%d, 1" % (sT, sW))
    e("s_lshl_b32 s%d, s%d, 8" % (sT, sT))
    e("s_add_u32 s%d, s%d, %d" % (sT, sT, SH))
    e("s_and_b32 s%d, s%d, 1" % (sT2, sW))
    e("s_lshl_b32 s%d, s%d, 3" % (sT2, sT2))
    e("v_and_b32 v%d, 15, v%d" % (vT0, vQ32))
    e("v_xor_b32 v%d, v%d, v%d" % (vT0, vHf, vT0))
    e("v_xor_b32 v%d, s%d, v%d" % (vT0, sT2, vT0))
    e("v_lshlrev_b32 v%d, 4, v%d" % (vT0, vT0))
    e("v_lshl_add_u32 v%d, v%d, 9, v%d" % (vT0, vQ32, vT0))
    e("v_add_u32 v%d, s%d, v%d" % (vA0, sT, vT0))
    for D in range(2):
        for t in range(2):
            acc = ACC + (D * 2 + t) * 16
            for g in range(4):
                e("v_cvt_pk_bf16_f32 v%d, v%d, v%d" % (vS + 8, acc + 4 * g, acc + 4 * g + 1))
                e("v_cvt_pk_bf16_f32 v%d, v%d, v%d" % (vS + 9, acc + 4 * g + 2, acc + 4 * g + 3))
                e("v_xor_b32 v%d, %d, v%d" % (vA1, (4 * D + 2 * (g & 1)) << 4, vA0))
                e("ds_write_b64 v%d, %s offset:%d" % (vA1, vr(vS + 8, 2), t * 16384 + (g >> 1) * 8))
    barrier()
    e("v_and_b32 v%d, 15, v%d" % (vT0, vLane))
    e("v_lshrrev_b32 v%d, 4, v%d" % (vT1, vLane))
    e("v_xor_b32 v%d, v%d, v%d" % (vT1, vT1, vT0))
    e("v_lshlrev_b32 v%d, 4, v%d" % (vT1, vT1))
    e("v_lshl_add_u32 v%d, v%d, 9, v%d" % (vT1, vT0, vT1))
    e("v_add_u32 v%d, %d, v%d" % (vA0, SH, vT1))
    for T3 in range(4):
        e("v_xor_b32 v%d, %d, v%d" % (vA1, (4 * T3) << 4, vA0))
        for Th in range(2):
            T = Th * 4 + T3
            for qt in range(4):
                e("ds_read_b128 %s, v%d offset:%d" % (ar((T * 4 + qt) * 4, 4), vA1, qt * 8192 + Th * 256))
        e("s_waitcnt lgkmcnt(0)")

    stamp()
    cm("==== phase 5 ====")
    def p5_reads(T, buf):
        base = FB + buf * 32
        off = st.chunks[C_WO + T]['off']
        for ct in range(7):
            for a in range(2):
                e("ds_read_b64_tr_b16 %s, v%d offset:%d" % (vr(base + ct * 4 + a * 2, 2), vWOr, off + a * 16 * 224 + ct * 32))
    def p5_mfma(T, buf, cts):
        base = FB + buf * 32
        for ct in cts:
            for qt in range(4):
                acc = ACC + (ct * 4 + qt) * 4
                c = "0" if T == 0 else vr(acc, 4)
                e("v_mfma_f32_16x16x32_bf16 %s, %s, %s, %s" % (vr(acc, 4), vr(base + ct * 4, 4), ar((T * 4 + qt) * 4, 4), c))
            st.emit_one()
    st.wait(C_WO + 0)
    p5_reads(0, 0)
    for T in range(8):
        e("s_waitcnt lgkmcnt(0)")
        st.release(C_WO + T)
        p5_mfma(T, T & 1, [0, 1, 2, 3])
        if T + 1 < 8:
            st.wait(C_WO + T + 1)
            p5_reads(T + 1, (T + 1) & 1)
        p5_mfma(T, T & 1, [4, 5, 6])
    st.emit_all()
    e("s_nop 15")
    stamp()
    e("v_lshlrev_b32 v%d, 4, v%d" % (vA0, vLane))
    for tp in range(14):
        acc = ACC + tp * 8
        for i in range(4):
            e("v_cvt_pk_bf16_f32 v%d, v%d, v%d" % (acc + i, acc + 2 * i, acc + 2 * i + 1))
        if tp % 4 == 0:
            e("s_add_u32 s%d, s%d, %d" % (sT, sPb, tp * 1024))
        e("buffer_store_dwordx4 %s, v%d, s[%d:%d], s%d offen offset:%d%s" % (vr(acc, 4), vA0, sWS, sWS + 3, sT, (tp % 4) * 1024, STPOL))
    e("s_waitcnt vmcnt(0)")
    stamp()
    if STAMPS:
        i = nstamp[0]; nstamp[0] += 2
        e("s_mov_b64 s[%d:%d], s[92:93]" % (64 + 2 * i, 65 + 2 * i))
        e("s_memrealtime s[%d:%d]" % (66 + 2 * i, 67 + 2 * i))
        e("s_waitcnt lgkmcnt(0)")
    stamp_flush()
    lab("L_main_end")
    e("s_endpgm")

def gen_reduce():
    L.append(".p2align 8")
    L.append(".globl reduce_kernel")
    L.append(".type reduce_kernel,@function")
    lab("reduce_kernel")
    e("s_cmp_ge_u32 s2, 224")
    e("s_cbranch_scc1 L_red_end")
    e("s_load_dwordx2 s[4:5], s[0:1], 40")
    e("s_load_dwordx2 s[6:7], s[0:1], 56")
    e("v_lshrrev_b32 v1, 6, v0")
    e("v_and_b32 v2, 63, v0")
    e("s_and_b32 s20, s2, 7")
    e("v_readfirstlane_b32 s21, v1")
    e("s_lshr_b32 s22, s2, 3")
    e("s_cmp_ge_u32 s22, 14")
    e("s_cselect_b32 s23, 1, 0")
    e("s_mul_i32 s24, s23, 14")
    e("s_sub_u32 s24, s22, s24")
    e("s_waitcnt lgkmcnt(0)")
    srd(8, 4, 8 * 128 * 448 * 2)
    srd(12, 6, 256 * 4 * 14 * 1024)
    e("s_lshl_b32 s25, s20, 1")
    e("s_add_u32 s25, s25, s23")
    e("s_lshl_b32 s25, s25, 6")
    e("s_add_u32 s25, s25, s21")
    e("s_mul_i32 s25, s25, 14")
    e("s_add_u32 s25, s25, s24")
    e("s_lshl_b32 s25, s25, 10")
    e("v_lshlrev_b32 v3, 4, v2")
    e("s_mov_b32 s31, 0xffff0000")
    e("s_nop 4")
    for h in range(16):
        e("s_add_u32 s26, s25, %d" % (h * 4 * 14 * 1024))
        e("buffer_load_dwordx4 v[%d:%d], v3, s[12:15], s26 offen" % (8 + 4 * h, 11 + 4 * h))
    e("s_and_b32 s27, s24, 1")
    e("s_lshl_b32 s27, s27, 1")
    e("s_lshr_b32 s28, s24, 1")
    e("s_lshl_b32 s29, s20, 7")
    e("s_lshl_b32 s30, s23, 6")
    e("s_add_u32 s29, s29, s30")
    e("s_lshl_b32 s30, s27, 4")
    e("s_add_u32 s29, s29, s30")
    e("s_mul_i32 s29, s29, 896")
    e("s_mul_i32 s30, s21, 224")
    e("s_add_u32 s29, s29, s30")
    e("s_lshl_b32 s30, s28, 5")
    e("s_add_u32 s29, s29, s30")
    e("v_and_b32 v4, 15, v2")
    e("v_mul_u32_u24 v4, 896, v4")
    e("v_lshrrev_b32 v5, 4, v2")
    e("v_lshl_add_u32 v4, v5, 3, v4")
    for i in range(8): e("v_mov_b32 v%d, 0" % (72 + i))
    for h in range(16):
        e("s_waitcnt vmcnt(%d)" % (15 - h))
        for i in range(4):
            e("v_lshlrev_b32 v6, 16, v%d" % (8 + 4 * h + i))
            e("v_and_b32 v7, s31, v%d" % (8 + 4 * h + i))
            e("v_add_f32 v%d, v%d, v6" % (72 + 2 * i, 72 + 2 * i))
            e("v_add_f32 v%d, v%d, v7" % (73 + 2 * i, 73 + 2 * i))
    e("v_cvt_pk_bf16_f32 v8, v72, v73")
    e("v_cvt_pk_bf16_f32 v9, v74, v75")
    e("v_cvt_pk_bf16_f32 v10, v76, v77")
    e("v_cvt_pk_bf16_f32 v11, v78, v79")
    e("buffer_store_dwordx2 v[8:9], v4, s[8:11], s29 offen")
    e("s_add_u32 s29, s29, %d" % (16 * 896))
    e("buffer_store_dwordx2 v[10:11], v4, s[8:11], s29 offen")
    e("s_waitcnt vmcnt(0)")
    lab("L_red_end")
    e("s_endpgm")

HEADER = """; Kernarg layout for this problem (64 bytes, ptrs only, base s[0:1]):
;   offset   0: d_in[0] x  shape=(8, 128, 448) dtype=bfloat16
;   offset   8: d_in[1] k_cache  shape=(8, 16, 512, 256) dtype=bfloat16
;   offset  16: d_in[2] v_cache  shape=(8, 16, 512, 256) dtype=bfloat16
;   offset  24: d_in[3] wq  shape=(448, 4096) dtype=bfloat16
;   offset  32: d_in[4] wo  shape=(4096, 448) dtype=bfloat16
;   offset  40: d_out     shape=(8, 128, 448) dtype=bfloat16
;   offset  48: d_debug   256 bytes
;   offset  56: d_ws      268435456 bytes workspace
; generated by gen.py
; @launch kernel=%s_kernel grid=(256,1,1) block=(256,1,1) lds=%d
; @launch kernel=reduce_kernel grid=(224,1,1) block=(256,1,1) lds=0
.amdgcn_target "amdgcn-amd-amdhsa--gfx950"
.text
.globl %s_kernel
.p2align 8
.type %s_kernel,@function
""" % (NAME, LDS_TOTAL, NAME, NAME)

FOOTER = """.section .rodata,"a"
.p2align 6
.amdhsa_kernel %s_kernel
  .amdhsa_next_free_vgpr 384
  .amdhsa_next_free_sgpr 102
  .amdhsa_accum_offset 256
  .amdhsa_group_segment_fixed_size 0
  .amdhsa_kernarg_size 64
  .amdhsa_user_sgpr_count 2
  .amdhsa_user_sgpr_kernarg_segment_ptr 1
  .amdhsa_system_sgpr_workgroup_id_x 1
.end_amdhsa_kernel
.p2align 6
.amdhsa_kernel reduce_kernel
  .amdhsa_next_free_vgpr 80
  .amdhsa_next_free_sgpr 40
  .amdhsa_accum_offset 80
  .amdhsa_group_segment_fixed_size 0
  .amdhsa_kernarg_size 64
  .amdhsa_user_sgpr_count 2
  .amdhsa_user_sgpr_kernarg_segment_ptr 1
  .amdhsa_system_sgpr_workgroup_id_x 1
.end_amdhsa_kernel
""" % NAME

gen_main()
gen_reduce()
with open(OUT, "w") as f:
    f.write(HEADER + "\n".join(L) + "\n" + FOOTER)
print("wrote", OUT, len(L), "lines")
```

```python
import struct, sys, os
KVPOL = os.environ.get("KVPOL", " nt")
STPOL = os.environ.get("STPOL", "")

OUT = sys.argv[1] if len(sys.argv) > 1 else "standalone__mha_block_cached__near_ridge.s"
NAME = "standalone__mha_block_cached__near_ridge"

L = []
def e(s): L.append("    " + s)
def lab(s): L.append(s + ":")
def cm(s): L.append("    ; " + s)

def f32bits(x): return struct.unpack("<I", struct.pack("<f", x))[0]

RING = 24576
SH = 4 * RING
LDS_TOTAL = 163840

sX, sK, sV, sWQ, sWO, sWS = 20, 24, 28, 32, 36, 40
sW = 44
sRing = 45
sXb, sWQb, sKb, sVb, sWOb, sPb = 46, 47, 48, 49, 50, 51
sT = 52
sC = 53
sB, sH, sHalf = 54, 55, 56
sT2 = 57
sMask = 58
sKc = [96, 97, 98, 99]

vLane = 1
vQ32 = 2
vHf = 3
vT0, vT1, vT2, vT3 = 4, 5, 6, 7
vXK = [8, 9, 10, 11]
vKA = [12, 13, 14, 15]
vTR = [16, 17]
vWOr = 18
vDX = [19, 20]
vDWQ = 21
vDK = [22, 23]
vDV = 24
vDWO = [25, 26, 27, 28, 29, 30, 31]
vA0, vA1, vA2, vA3, vA4, vA5, vA6, vA7 = 32, 33, 34, 35, 36, 37, 38, 39
vS = 40
FB = 64
ACC = 128

def vr(b, n): return "v[%d:%d]" % (b, b + n - 1)
def ar(b, n): return "a[%d:%d]" % (b, b + n - 1)

class Stream:
    def __init__(self):
        self.chunks = []
        self.vm_issued = 0
        self.last_instr = {}
        self.pending = []
        self.next_chunk = 0
        self.pos = 0
    def add(self, kind, idx, size):
        if self.pos + size > RING:
            self.pos = 0
        self.chunks.append(dict(kind=kind, idx=idx, size=size, off=self.pos))
        self.pos += size
    def dep(self, c):
        a = self.chunks[c]
        for p in range(c - 1, -1, -1):
            b = self.chunks[p]
            if a['off'] < b['off'] + b['size'] and b['off'] < a['off'] + a['size']:
                return p
        return -1
    def release(self, consumed):
        while self.next_chunk < len(self.chunks) and self.dep(self.next_chunk) <= consumed:
            c = self.next_chunk
            n = self.chunks[c]['size'] // 1024
            for i in range(n):
                self.pending.append((c, i))
            self.next_chunk += 1
    def emit_one(self):
        if not self.pending:
            return False
        c, n = self.pending.pop(0)
        ch = self.chunks[c]
        emit_dma(ch['kind'], ch['idx'], n, ch['off'] + n * 1024)
        self.vm_issued += 1
        self.last_instr[c] = self.vm_issued
        return True
    def emit_all(self):
        while self.emit_one():
            pass
    def wait(self, c):
        while any(p[0] <= c for p in self.pending):
            self.emit_one()
        n = self.vm_issued - self.last_instr[c]
        e("s_waitcnt vmcnt(%d)" % n)

def emit_dma(kind, idx, n, ringoff):
    e("s_add_u32 m0, s%d, %d" % (sRing, ringoff))
    if kind == 'wq':
        e("s_add_u32 s%d, s%d, %d" % (sT, sWQb, (32 * idx + 8 * n) * 8192))
        e("buffer_load_dwordx4 v%d, s[%d:%d], s%d offen lds" % (vDWQ, sWQ, sWQ + 3, sT))
    elif kind == 'k':
        kt, db = idx
        e("s_add_u32 s%d, s%d, %d" % (sT, sKc[db], (32 * kt + 8 * n) * 512))
        e("buffer_load_dwordx4 v%d, s[%d:%d], s%d offen%s lds" % (vDK[n & 1], sK, sK + 3, sT, KVPOL))
    elif kind == 'v':
        e("s_add_u32 s%d, s%d, %d" % (sT, sVb, (32 * idx + 8 * n) * 512))
        e("buffer_load_dwordx4 v%d, s[%d:%d], s%d offen%s lds" % (vDV, sV, sV + 3, sT, KVPOL))
    elif kind == 'wo':
        e("s_add_u32 s%d, s%d, %d" % (sT, sWOb, (32 * idx) * 896))
        e("buffer_load_dwordx4 v%d, s[%d:%d], s%d offen lds" % (vDWO[n], sWO, sWO + 3, sT))
    else:
        raise ValueError(kind)

def srd(s, lo, nbytes):
    e("s_mov_b32 s%d, s%d" % (s, lo))
    e("s_and_b32 s%d, s%d, 0xffff" % (s + 1, lo + 1))
    e("s_mov_b32 s%d, %d" % (s + 2, nbytes))
    e("s_mov_b32 s%d, 0x00020000" % (s + 3))

import os
STAMPS = bool(os.environ.get("GEN_STAMPS"))
nstamp = [0]
def stamp():
    if not STAMPS: return
    i = nstamp[0]; nstamp[0] += 1
    e("s_memtime s[%d:%d]" % (64 + 2 * i, 65 + 2 * i))
    e("s_waitcnt lgkmcnt(0)")
def stamp_flush():
    if not STAMPS: return
    e("s_mov_b32 s%d, 0x10000000" % (sWS + 2))
    e("s_lshl_b32 s%d, s2, 2" % sT)
    e("s_add_u32 s%d, s%d, s%d" % (sT, sT, sW))
    e("s_lshl_b32 s%d, s%d, 8" % (sT, sT))
    e("s_add_u32 s%d, s%d, %d" % (sT, sT, 128 << 20))
    e("v_mov_b32 v%d, 0" % vA1)
    for i in range(nstamp[0]):
        e("v_mov_b32 v%d, s%d" % (vS, 64 + 2 * i))
        e("v_mov_b32 v%d, s%d" % (vS + 1, 65 + 2 * i))
        e("buffer_store_dwordx2 %s, v%d, s[%d:%d], s%d offen offset:%d" % (vr(vS, 2), vA1, sWS, sWS + 3, sT, 8 * i))
        e("s_nop 2")

def barrier():
    e("s_waitcnt lgkmcnt(0)")
    e("s_barrier")

def gen_main():
    lab(NAME + "_kernel")
    e("s_cmp_ge_u32 s2, 256")
    e("s_cbranch_scc1 L_main_end")
    stamp()
    if STAMPS:
        e("s_memrealtime s[92:93]")
        e("s_waitcnt lgkmcnt(0)")
    e("s_load_dwordx8 s[4:11], s[0:1], 0")
    e("s_load_dwordx8 s[12:19], s[0:1], 32")
    e("v_lshrrev_b32 v%d, 6, v0" % vT0)
    e("v_and_b32 v%d, 63, v0" % vLane)
    e("s_lshr_b32 s%d, s2, 5" % sB)
    e("v_readfirstlane_b32 s%d, v%d" % (sW, vT0))
    e("s_and_b32 s%d, s2, 7" % sH)
    e("s_lshl_b32 s%d, s%d, 1" % (sH, sH))
    e("s_lshr_b32 s%d, s2, 3" % sHalf)
    e("s_and_b32 s%d, s%d, 1" % (sT, sHalf))
    e("s_add_u32 s%d, s%d, s%d" % (sH, sH, sT))
    e("s_lshr_b32 s%d, s2, 4" % sHalf)
    e("s_and_b32 s%d, s%d, 1" % (sHalf, sHalf))
    e("s_mov_b32 s%d, 0x%08x" % (sC, f32bits(1.4426950408889634 / 16.0)))
    e("v_and_b32 v%d, 31, v%d" % (vQ32, vLane))
    e("v_lshrrev_b32 v%d, 5, v%d" % (vHf, vLane))
    e("s_mul_i32 s%d, s%d, %d" % (sRing, sW, RING))
    e("s_waitcnt lgkmcnt(0)")
    srd(sX, 4, 8 * 128 * 448 * 2)
    srd(sK, 6, 8 * 16 * 512 * 256 * 2)
    srd(sV, 8, 8 * 16 * 512 * 256 * 2)
    srd(sWQ, 10, 448 * 4096 * 2)
    srd(sWO, 12, 4096 * 448 * 2)
    srd(sWS, 18, 256 * 4 * 15 * 1024)
    if os.environ.get("NOSHARE"):
        e("s_cmp_eq_u32 s%d, 1" % sHalf)
        for i in range(2):
            e("s_cselect_b32 s60, s%d, s%d" % (sV + i, sK + i))
            e("s_cselect_b32 s61, s%d, s%d" % (sK + i, sV + i))
            e("s_mov_b32 s%d, s60" % (sK + i))
            e("s_mov_b32 s%d, s61" % (sV + i))
    e("s_lshl_b32 s%d, s%d, 1" % (sT, sB))
    e("s_add_u32 s%d, s%d, s%d" % (sT, sT, sHalf))
    e("s_mul_i32 s%d, s%d, %d" % (sXb, sT, 64 * 896))
    e("s_lshl_b32 s%d, s%d, 9" % (sWQb, sH))
    e("s_lshl_b32 s%d, s%d, 7" % (sT, sW))
    e("s_add_u32 s%d, s%d, s%d" % (sWQb, sWQb, sT))
    e("s_lshl_b32 s%d, s%d, 4" % (sT, sB))
    e("s_add_u32 s%d, s%d, s%d" % (sT, sT, sH))
    e("s_lshl_b32 s%d, s%d, 18" % (sT, sT))
    e("s_lshl_b32 s%d, s%d, 16" % (sT2, sW))
    e("s_add_u32 s%d, s%d, s%d" % (sKb, sT, sT2))
    e("s_lshl_b32 s%d, s%d, 7" % (sT2, sW))
    e("s_add_u32 s%d, s%d, s%d" % (sVb, sT, sT2))
    for db in range(4):
        e("s_add_u32 s%d, s%d, %d" % (sT2, sW, db))
        e("s_and_b32 s%d, s%d, 3" % (sT2, sT2))
        e("s_lshl_b32 s%d, s%d, 7" % (sT2, sT2))
        e("s_add_u32 s%d, s%d, s%d" % (sKc[db], sKb, sT2))
    e("s_mul_i32 s%d, s%d, %d" % (sWOb, sH, 256 * 896))
    e("s_mul_i32 s%d, s%d, 224" % (sT, sW))
    e("s_add_u32 s%d, s%d, s%d" % (sWOb, sWOb, sT))
    e("s_lshl_b32 s%d, s2, 2" % sT)
    e("s_add_u32 s%d, s%d, s%d" % (sT, sT, sW))
    e("s_mul_i32 s%d, s%d, %d" % (sPb, sT, 15 * 1024))

    cm("DMA voffsets")
    r8, p8 = vT0, vT1
    e("v_lshrrev_b32 v%d, 3, v%d" % (r8, vLane))
    e("v_and_b32 v%d, 7, v%d" % (p8, vLane))
    e("v_lshrrev_b32 v%d, 1, v%d" % (vT2, r8))
    e("v_xor_b32 v%d, v%d, v%d" % (vT3, p8, vT2))
    e("v_lshlrev_b32 v%d, 4, v%d" % (vA0, vT3))
    e("v_xor_b32 v%d, 64, v%d" % (vA1, vA0))
    e("v_mul_u32_u24 v%d, 896, v%d" % (vA2, r8))
    e("v_add_u32 v%d, v%d, v%d" % (vDX[0], vA2, vA0))
    e("v_add_u32 v%d, v%d, v%d" % (vDX[1], vA2, vA1))
    e("v_lshlrev_b32 v%d, 9, v%d" % (vA2, r8))
    e("v_add_u32 v%d, v%d, v%d" % (vDK[0], vA2, vA0))
    e("v_add_u32 v%d, v%d, v%d" % (vDK[1], vA2, vA1))
    e("v_and_b32 v%d, 1, v%d" % (vT3, vT2))
    e("v_lshlrev_b32 v%d, 2, v%d" % (vT3, vT3))
    e("v_xor_b32 v%d, v%d, v%d" % (vT3, p8, vT3))
    e("v_lshlrev_b32 v%d, 4, v%d" % (vT3, vT3))
    e("v_add_u32 v%d, v%d, v%d" % (vDV, vA2, vT3))
    e("v_lshlrev_b32 v%d, 13, v%d" % (vA2, r8))
    e("v_add_u32 v%d, v%d, v%d" % (vDWQ, vA2, vT3))
    for n in range(7):
        e("v_add_u32 v%d, %d, v%d" % (vT0, 64 * n, vLane))
        e("v_mul_u32_u24 v%d, 4682, v%d" % (vT1, vT0))
        e("v_lshrrev_b32 v%d, 16, v%d" % (vT1, vT1))
        e("v_mul_u32_u24 v%d, 14, v%d" % (vT2, vT1))
        e("v_sub_u32 v%d, v%d, v%d" % (vT2, vT0, vT2))
        e("v_mul_u32_u24 v%d, 896, v%d" % (vT1, vT1))
        e("v_lshlrev_b32 v%d, 4, v%d" % (vT2, vT2))
        e("v_add_u32 v%d, v%d, v%d" % (vDWO[n], vT1, vT2))
    e("s_nop 4")

    st = Stream()
    for j in range(14): st.add('wq', j, 4096)
    for kt in range(4):
        for db in range(4): st.add('k', (kt, db), 4096)
    for j in range(16): st.add('v', j, 4096)
    for t in range(8): st.add('wo', t, 7168)
    C_WQ, C_K, C_V, C_WO = 0, 14, 30, 46

    if not os.environ.get("NOWARM"):
        cm("L2 warm-up prefetch")
        e("s_lshl_b32 s60, s%d, 1" % sB)
        e("s_add_u32 s60, s60, s%d" % sHalf)
        e("s_and_b32 s61, s%d, 1" % sW)
        e("s_mul_i32 s62, s60, 28")
        e("s_mul_i32 s63, s61, 14")
        e("s_add_u32 s62, s62, s63")
        e("s_lshl_b32 s62, s62, 13")
        e("s_lshl_b32 s63, s%d, 9" % sH)
        e("s_add_u32 s62, s62, s63")
        e("s_lshl_b32 s63, s%d, 8" % sH)
        e("s_lshl_b32 s100, s60, 4")
        e("s_add_u32 s63, s63, s100")
        e("s_mul_i32 s63, s63, 896")
        e("s_mul_i32 s100, s61, 7168")
        e("s_add_u32 s63, s63, s100")
        e("v_lshlrev_b32 v%d, 13, v%d" % (vT0, vHf))
        e("v_lshl_add_u32 v%d, v%d, 4, v%d" % (vT0, vQ32, vT0))
        e("v_lshlrev_b32 v%d, 4, v%d" % (vT1, vLane))
        e("s_cmp_ge_u32 s%d, 2" % sW)
        e("s_cbranch_scc1 L_warm_wo")
        for k in range(7):
            e("s_add_u32 s100, s62, %d" % (k * 2 * 8192))
            e("buffer_load_dwordx4 v[%d:%d], v%d, s[%d:%d], s100 offen" % (ACC + 4 * k, ACC + 4 * k + 3, vT0, sWQ, sWQ + 3))
        e("s_branch L_warm_done")
        lab("L_warm_wo")
        for k in range(7):
            e("s_add_u32 s100, s63, %d" % (k * 1024))
            e("buffer_load_dwordx4 v[%d:%d], v%d, s[%d:%d], s100 offen" % (ACC + 4 * k, ACC + 4 * k + 3, vT1, sWO, sWO + 3))
        lab("L_warm_done")
        st.vm_issued += 7
    cm("x tile DMA")
    e("s_mul_i32 s%d, s%d, 14" % (sT2, sW))
    for k in range(14):
        e("s_add_u32 s60, s%d, %d" % (sT2, k))
        e("s_lshr_b32 s61, s60, 3")
        e("s_and_b32 s62, s60, 7")
        e("s_lshl_b32 s63, s60, 10")
        e("s_add_u32 m0, s63, %d" % SH)
        e("s_mul_i32 s63, s62, %d" % (8 * 896))
        e("s_lshl_b32 s61, s61, 7")
        e("s_add_u32 s63, s63, s61")
        e("s_add_u32 s63, s63, s%d" % sXb)
        e("buffer_load_dwordx4 v%d, s[%d:%d], s63 offen lds" % (vDX[k & 1], sX, sX + 3))
        st.vm_issued += 1
    x_last = st.vm_issued
    st.release(-1)
    st.emit_all()

    cm("LDS read address regs")
    e("v_lshrrev_b32 v%d, 1, v%d" % (vT0, vQ32))
    e("v_and_b32 v%d, 7, v%d" % (vT0, vT0))
    e("v_lshlrev_b32 v%d, 7, v%d" % (vT1, vQ32))
    for k in range(4):
        e("v_add_u32 v%d, %d, v%d" % (vT2, 2 * k, vHf))
        e("v_xor_b32 v%d, v%d, v%d" % (vT2, vT2, vT0))
        e("v_lshl_add_u32 v%d, v%d, 4, v%d" % (vT2, vT2, vT1))
        e("v_add_u32 v%d, %d, v%d" % (vXK[k], SH, vT2))
        e("v_add_u32 v%d, s%d, v%d" % (vKA[k], sRing, vT2))
    e("v_lshrrev_b32 v%d, 4, v%d" % (vT0, vLane))
    e("v_and_b32 v%d, 1, v%d" % (vT0, vT0))
    e("v_and_b32 v%d, 15, v%d" % (vT1, vLane))
    e("v_lshrrev_b32 v%d, 2, v%d" % (vT2, vT1))
    e("v_and_b32 v%d, 3, v%d" % (vT3, vT1))
    e("v_lshl_add_u32 v%d, v%d, 3, v%d" % (vA0, vHf, vT2))
    e("v_lshlrev_b32 v%d, 7, v%d" % (vA0, vA0))
    e("v_lshrrev_b32 v%d, 1, v%d" % (vA1, vT3))
    e("v_lshl_add_u32 v%d, v%d, 1, v%d" % (vA1, vT0, vA1))
    e("v_lshrrev_b32 v%d, 1, v%d" % (vA2, vT2))
    e("v_lshlrev_b32 v%d, 2, v%d" % (vA2, vA2))
    e("v_xor_b32 v%d, v%d, v%d" % (vA1, vA1, vA2))
    e("v_lshl_add_u32 v%d, v%d, 4, v%d" % (vA0, vA1, vA0))
    e("v_and_b32 v%d, 1, v%d" % (vA1, vT3))
    e("v_lshl_add_u32 v%d, v%d, 3, v%d" % (vA0, vA1, vA0))
    e("v_add_u32 v%d, s%d, v%d" % (vTR[0], sRing, vA0))
    e("v_xor_b32 v%d, 64, v%d" % (vTR[1], vTR[0]))
    e("v_lshrrev_b32 v%d, 4, v%d" % (vA0, vLane))
    e("v_lshl_add_u32 v%d, v%d, 2, v%d" % (vA0, vA0, vT2))
    e("v_mul_u32_u24 v%d, 224, v%d" % (vA0, vA0))
    e("v_lshl_add_u32 v%d, v%d, 3, v%d" % (vA0, vT3, vA0))
    e("v_add_u32 v%d, s%d, v%d" % (vWOr, sRing, vA0))

    e("s_waitcnt vmcnt(%d)" % (st.vm_issued - x_last))
    e("s_barrier")

    stamp()
    cm("==== phase 1: Q^T = wq^T x^T ====")
    def p1_reads(j, buf):
        base = FB + buf * 32
        off = st.chunks[C_WQ + j]['off']
        for ks in range(2):
            for D in range(2):
                for a in range(2):
                    r = base + (ks * 2 + D) * 4 + a * 2
                    e("ds_read_b64_tr_b16 %s, v%d offset:%d" % (vr(r, 2), vTR[D], off + (16 * ks + 4 * a) * 128))
            s = 2 * j + ks
            for t in range(2):
                r = base + 16 + (ks * 2 + t) * 4
                e("ds_read_b128 %s, v%d offset:%d" % (vr(r, 4), vXK[s & 3], (s >> 2) * 8192 + t * 4096))
    def p1_mfma(j, buf, half):
        base = FB + buf * 32
        ks = half
        for D in range(2):
            for t in range(2):
                acc = ACC + (D * 2 + t) * 16
                c = "0" if (j == 0 and ks == 0) else vr(acc, 16)
                e("v_mfma_f32_32x32x16_bf16 %s, %s, %s, %s" % (vr(acc, 16), vr(base + (ks * 2 + D) * 4, 4), vr(base + 16 + (ks * 2 + t) * 4, 4), c))
                if (D * 2 + t) % 2 == 1:
                    st.emit_one()
    st.wait(C_WQ + 0)
    p1_reads(0, 0)
    for j in range(14):
        e("s_waitcnt lgkmcnt(0)")
        st.release(C_WQ + j)
        p1_mfma(j, j & 1, 0)
        if j + 1 < 14:
            st.wait(C_WQ + j + 1)
            p1_reads(j + 1, (j + 1) & 1)
        p1_mfma(j, j & 1, 1)
    st.emit_all()
    stamp()
    e("s_barrier")
    e("s_nop 15")
    e("s_lshr_b32 s%d, s%d, 1" % (sT, sW))
    e("s_lshl_b32 s%d, s%d, 8" % (sT, sT))
    e("s_add_u32 s%d, s%d, %d" % (sT, sT, SH))
    e("s_and_b32 s%d, s%d, 1" % (sT2, sW))
    e("s_lshl_b32 s%d, s%d, 3" % (sT2, sT2))
    e("v_and_b32 v%d, 15, v%d" % (vT0, vQ32))
    e("v_xor_b32 v%d, s%d, v%d" % (vT0, sT2, vT0))
    e("v_lshlrev_b32 v%d, 4, v%d" % (vT0, vT0))
    e("v_lshl_add_u32 v%d, v%d, 9, v%d" % (vT0, vQ32, vT0))
    e("v_lshl_add_u32 v%d, v%d, 3, v%d" % (vT0, vHf, vT0))
    e("v_add_u32 v%d, s%d, v%d" % (vA0, sT, vT0))
    for D in range(2):
        for t in range(2):
            acc = ACC + (D * 2 + t) * 16
            for g in range(4):
                e("v_cvt_pk_bf16_f32 v%d, v%d, v%d" % (vS + 0, acc + 4 * g, acc + 4 * g + 1))
                e("v_cvt_pk_bf16_f32 v%d, v%d, v%d" % (vS + 1, acc + 4 * g + 2, acc + 4 * g + 3))
                e("v_xor_b32 v%d, %d, v%d" % (vA1, (4 * D + g) << 4, vA0))
                e("ds_write_b64 v%d, %s offset:%d" % (vA1, vr(vS, 2), t * 16384))
    barrier()
    e("v_and_b32 v%d, 15, v%d" % (vT0, vQ32))
    e("v_xor_b32 v%d, v%d, v%d" % (vT0, vHf, vT0))
    e("v_lshlrev_b32 v%d, 4, v%d" % (vT0, vT0))
    e("v_lshl_add_u32 v%d, v%d, 9, v%d" % (vT0, vQ32, vT0))
    e("v_add_u32 v%d, %d, v%d" % (vA0, SH, vT0))
    for db in range(4):
        e("s_add_u32 s%d, s%d, %d" % (sT2, sW, db))
        e("s_and_b32 s%d, s%d, 3" % (sT2, sT2))
        e("s_lshl_b32 s%d, s%d, 7" % (sT2, sT2))
        e("v_xor_b32 v%d, s%d, v%d" % (vA1, sT2, vA0))
        for k in range(4):
            sidx = 4 * db + k
            e("v_xor_b32 v%d, %d, v%d" % (vA2, k << 5, vA1))
            for t in range(2):
                e("ds_read_b128 %s, v%d offset:%d" % (ar((sidx * 2 + t) * 4, 4), vA2, t * 16384))
        e("s_waitcnt lgkmcnt(0)")

    stamp()
    cm("==== phase 2 ====")
    def p2_reads(c, buf):
        base = FB + buf * 32
        off = st.chunks[C_K + c]['off']
        for k in range(4):
            e("ds_read_b128 %s, v%d offset:%d" % (vr(base + 4 * k, 4), vKA[k], off))
    def p2_mfma(c, buf, half):
        base = FB + buf * 32
        kt, db = divmod(c, 4)
        for k in range(2 * half, 2 * half + 2):
            s = 4 * db + k
            for t in range(2):
                acc = ACC + (kt * 2 + t) * 16
                cc = "0" if s == 0 else vr(acc, 16)
                e("v_mfma_f32_32x32x16_bf16 %s, %s, %s, %s" % (vr(acc, 16), vr(base + 4 * k, 4), ar((s * 2 + t) * 4, 4), cc))
            st.emit_one()
    st.wait(C_K + 0)
    p2_reads(0, 0)
    for c in range(16):
        e("s_waitcnt lgkmcnt(0)")
        st.release(C_K + c)
        p2_mfma(c, c & 1, 0)
        if c + 1 < 16:
            st.wait(C_K + c + 1)
            p2_reads(c + 1, (c + 1) & 1)
        p2_mfma(c, c & 1, 1)
    st.emit_all()
    e("s_nop 15")

    stamp()
    cm("==== phase 3: softmax ====")
    e("s_mov_b32 s%d, 0xffff0000" % sMask)
    vM = [vS + 0, vS + 1]
    def accreg(kt, t, i): return ACC + (kt * 2 + t) * 16 + i
    for t in range(2):
        for kt in range(4):
            for i in range(0, 16, 2):
                a0, a1 = accreg(kt, t, i), accreg(kt, t, i + 1)
                e("v_cvt_pk_bf16_f32 v%d, v%d, v%d" % (a1, a0, a1))
                e("v_lshlrev_b32 v%d, 16, v%d" % (a0, a1))
                e("v_and_b32 v%d, s%d, v%d" % (a1, sMask, a1))
    mreg = [vS + 0, vS + 2]
    lreg = [vS + 1, vS + 3]
    tmpm = [vS + 4, vS + 5]
    for t in range(2):
        vals = [accreg(kt, t, i) for kt in range(4) for i in range(16)]
        e("v_max_f32 v%d, v%d, v%d" % (mreg[t], vals[0], vals[1]))
        e("v_max_f32 v%d, v%d, v%d" % (tmpm[t], vals[2], vals[3]))
    for idx in range(4, 64, 4):
        for t in range(2):
            vals = [accreg(kt, t, i) for kt in range(4) for i in range(16)]
            e("v_max3_f32 v%d, v%d, v%d, v%d" % (mreg[t], mreg[t], vals[idx], vals[idx + 1]))
            e("v_max3_f32 v%d, v%d, v%d, v%d" % (tmpm[t], tmpm[t], vals[idx + 2], vals[idx + 3]))
    for t in range(2):
        e("v_max_f32 v%d, v%d, v%d" % (mreg[t], mreg[t], tmpm[t]))
    nmc = [vS + 6, vS + 7]
    for t in range(2):
        e("v_mul_f32 v%d, s%d, v%d" % (nmc[t], sC, mreg[t]))
    for kt in range(4):
        for i in range(16):
            for t in range(2):
                a = accreg(kt, t, i)
                e("v_fma_f32 v%d, v%d, s%d, -v%d" % (a, a, sC, nmc[t]))
            for t in range(2):
                a = accreg(kt, t, i)
                e("v_exp_f32 v%d, v%d" % (a, a))
    e("s_nop 0")
    sp = [[vS + 8, vS + 9], [vS + 10, vS + 11]]
    for t in range(2):
        vals = [accreg(kt, t, i) for kt in range(4) for i in range(16)]
        e("v_add_f32 v%d, v%d, v%d" % (sp[t][0], vals[0], vals[1]))
        e("v_add_f32 v%d, v%d, v%d" % (sp[t][1], vals[2], vals[3]))
    for idx in range(4, 64, 2):
        for t in range(2):
            vals = [accreg(kt, t, i) for kt in range(4) for i in range(16)]
            e("v_add_f32 v%d, v%d, v%d" % (sp[t][0], sp[t][0], vals[idx]))
            e("v_add_f32 v%d, v%d, v%d" % (sp[t][1], sp[t][1], vals[idx + 1]))
    for t in range(2):
        e("v_add_f32 v%d, v%d, v%d" % (lreg[t], sp[t][0], sp[t][1]))
    e("s_lshl_b32 s%d, s%d, 10" % (sT, sW))
    e("s_add_u32 s%d, s%d, %d" % (sT, sT, SH))
    e("v_lshlrev_b32 v%d, 3, v%d" % (vT0, vQ32))
    e("v_lshl_add_u32 v%d, v%d, 9, v%d" % (vT1, vHf, vT0))
    e("v_add_u32 v%d, s%d, v%d" % (vA0, sT, vT1))
    e("v_add_u32 v%d, %d, v%d" % (vA1, SH, vT0))
    for t in range(2):
        e("ds_write_b64 v%d, %s offset:%d" % (vA0, vr(mreg[t], 2), t * 256))
    barrier()
    ML = FB
    for t in range(2):
        for k in range(8):
            e("ds_read_b64 %s, v%d offset:%d" % (vr(ML + (t * 8 + k) * 2, 2), vA1, k * 512 + t * 256))
        e("s_waitcnt lgkmcnt(0)")
    barrier()
    fac = [vS + 12, vS + 13]
    for t in range(2):
        mm = vS + 14 + t
        ms = [ML + (t * 8 + k) * 2 for k in range(8)]
        e("v_max3_f32 v%d, v%d, v%d, v%d" % (mm, ms[0], ms[1], ms[2]))
        e("v_max3_f32 v%d, v%d, v%d, v%d" % (mm, mm, ms[3], ms[4]))
        e("v_max3_f32 v%d, v%d, v%d, v%d" % (mm, mm, ms[5], ms[6]))
        e("v_max_f32 v%d, v%d, v%d" % (mm, mm, ms[7]))
        for k in range(8):
            e("v_sub_f32 v%d, v%d, v%d" % (ms[k], ms[k], mm))
            e("v_mul_f32 v%d, s%d, v%d" % (ms[k], sC, ms[k]))
            e("v_exp_f32 v%d, v%d" % (ms[k], ms[k]))
        e("s_nop 0")
        lg = vS + 16 + t
        e("v_mul_f32 v%d, v%d, v%d" % (lg, ms[0], ms[0] + 1))
        for k in range(1, 8):
            e("v_fmac_f32 v%d, v%d, v%d" % (lg, ms[k], ms[k] + 1))
        e("v_rcp_f32 v%d, v%d" % (lg, lg))
        e("v_sub_f32 v%d, v%d, v%d" % (fac[t], mreg[t], mm))
        e("v_mul_f32 v%d, s%d, v%d" % (fac[t], sC, fac[t]))
        e("v_exp_f32 v%d, v%d" % (fac[t], fac[t]))
        e("s_nop 0")
        e("v_mul_f32 v%d, v%d, v%d" % (fac[t], fac[t], lg))
    e("s_lshl_b32 s%d, s%d, 8" % (sT, sW))
    e("s_add_u32 s%d, s%d, %d" % (sT, sT, SH))
    e("v_and_b32 v%d, 15, v%d" % (vT0, vQ32))
    e("v_lshlrev_b32 v%d, 4, v%d" % (vT0, vT0))
    e("v_lshl_add_u32 v%d, v%d, 10, v%d" % (vT0, vQ32, vT0))
    e("v_lshl_add_u32 v%d, v%d, 3, v%d" % (vT1, vHf, vT0))
    e("v_add_u32 v%d, s%d, v%d" % (vA0, sT, vT1))
    for kt in range(4):
        for g in range(4):
            e("v_xor_b32 v%d, %d, v%d" % (vA1, (4 * kt + g) << 4, vA0))
            for t in range(2):
                a = accreg(kt, t, 4 * g)
                for i in range(4):
                    e("v_mul_f32 v%d, v%d, v%d" % (a + i, a + i, fac[t]))
                pk = vS + 18 + 2 * t
                e("v_cvt_pk_bf16_f32 v%d, v%d, v%d" % (pk, a, a + 1))
                e("v_cvt_pk_bf16_f32 v%d, v%d, v%d" % (pk + 1, a + 2, a + 3))
                e("ds_write_b64 v%d, %s offset:%d" % (vA1, vr(pk, 2), t * 32768))
    vPR = [vS + 0, vS + 1, vS + 2, vS + 3, vS + 4, vS + 5, vS + 6, vS + 7]
    e("v_and_b32 v%d, 15, v%d" % (vT0, vQ32))
    e("v_xor_b32 v%d, v%d, v%d" % (vT0, vHf, vT0))
    e("v_lshlrev_b32 v%d, 4, v%d" % (vT0, vT0))
    e("v_lshl_add_u32 v%d, v%d, 10, v%d" % (vT0, vQ32, vT0))
    e("v_add_u32 v%d, %d, v%d" % (vA2, SH, vT0))
    e("s_waitcnt lgkmcnt(0)")
    for k in range(8):
        e("v_xor_b32 v%d, %d, v%d" % (vPR[k], (2 * k) << 4, vA2))
    e("s_barrier")

    stamp()
    cm("==== phase 4 ====")
    def p4_reads(j, buf):
        base = FB + buf * 32
        off = st.chunks[C_V + j]['off']
        for ks in range(2):
            for D in range(2):
                for a in range(2):
                    r = base + (ks * 2 + D) * 4 + a * 2
                    e("ds_read_b64_tr_b16 %s, v%d offset:%d" % (vr(r, 2), vTR[D], off + (16 * ks + 4 * a) * 128))
            s = 2 * j + ks
            for t in range(2):
                r = base + 16 + (ks * 2 + t) * 4
                e("ds_read_b128 %s, v%d offset:%d" % (vr(r, 4), vPR[s & 7], (s >> 3) * 256 + t * 32768))
    def p4_mfma(j, buf, half):
        base = FB + buf * 32
        ks = half
        for D in range(2):
            for t in range(2):
                acc = ACC + (D * 2 + t) * 16
                c = "0" if (j == 0 and ks == 0) else vr(acc, 16)
                e("v_mfma_f32_32x32x16_bf16 %s, %s, %s, %s" % (vr(acc, 16), vr(base + (ks * 2 + D) * 4, 4), vr(base + 16 + (ks * 2 + t) * 4, 4), c))
                if (D * 2 + t) % 2 == 1:
                    st.emit_one()
    st.wait(C_V + 0)
    p4_reads(0, 0)
    for j in range(16):
        e("s_waitcnt lgkmcnt(0)")
        st.release(C_V + j)
        p4_mfma(j, j & 1, 0)
        if j + 1 < 16:
            st.wait(C_V + j + 1)
            p4_reads(j + 1, (j + 1) & 1)
        p4_mfma(j, j & 1, 1)
    st.emit_all()
    stamp()
    e("s_barrier")
    e("s_nop 15")
    e("s_lshr_b32 s%d, s%d, 1" % (sT, sW))
    e("s_lshl_b32 s%d, s%d, 8" % (sT, sT))
    e("s_add_u32 s%d, s%d, %d" % (sT, sT, SH))
    e("s_and_b32 s%d, s%d, 1" % (sT2, sW))
    e("s_lshl_b32 s%d, s%d, 3" % (sT2, sT2))
    e("v_and_b32 v%d, 15, v%d" % (vT0, vQ32))
    e("v_xor_b32 v%d, v%d, v%d" % (vT0, vHf, vT0))
    e("v_xor_b32 v%d, s%d, v%d" % (vT0, sT2, vT0))
    e("v_lshlrev_b32 v%d, 4, v%d" % (vT0, vT0))
    e("v_lshl_add_u32 v%d, v%d, 9, v%d" % (vT0, vQ32, vT0))
    e("v_add_u32 v%d, s%d, v%d" % (vA0, sT, vT0))
    for D in range(2):
        for t in range(2):
            acc = ACC + (D * 2 + t) * 16
            for g in range(4):
                e("v_cvt_pk_bf16_f32 v%d, v%d, v%d" % (vS + 8, acc + 4 * g, acc + 4 * g + 1))
                e("v_cvt_pk_bf16_f32 v%d, v%d, v%d" % (vS + 9, acc + 4 * g + 2, acc + 4 * g + 3))
                e("v_xor_b32 v%d, %d, v%d" % (vA1, (4 * D + 2 * (g & 1)) << 4, vA0))
                e("ds_write_b64 v%d, %s offset:%d" % (vA1, vr(vS + 8, 2), t * 16384 + (g >> 1) * 8))
    barrier()
    e("v_and_b32 v%d, 15, v%d" % (vT0, vLane))
    e("v_lshrrev_b32 v%d, 4, v%d" % (vT1, vLane))
    e("v_xor_b32 v%d, v%d, v%d" % (vT1, vT1, vT0))
    e("v_lshlrev_b32 v%d, 4, v%d" % (vT1, vT1))
    e("v_lshl_add_u32 v%d, v%d, 9, v%d" % (vT1, vT0, vT1))
    e("v_add_u32 v%d, %d, v%d" % (vA0, SH, vT1))
    for T3 in range(4):
        e("v_xor_b32 v%d, %d, v%d" % (vA1, (4 * T3) << 4, vA0))
        for Th in range(2):
            T = Th * 4 + T3
            for qt in range(4):
                e("ds_read_b128 %s, v%d offset:%d" % (ar((T * 4 + qt) * 4, 4), vA1, qt * 8192 + Th * 256))
        e("s_waitcnt lgkmcnt(0)")

    stamp()
    cm("==== phase 5 ====")
    def p5_reads(T, buf):
        base = FB + buf * 32
        off = st.chunks[C_WO + T]['off']
        for ct in range(7):
            for a in range(2):
                e("ds_read_b64_tr_b16 %s, v%d offset:%d" % (vr(base + ct * 4 + a * 2, 2), vWOr, off + a * 16 * 224 + ct * 32))
    def p5_mfma(T, buf, cts):
        base = FB + buf * 32
        for ct in cts:
            for qt in range(4):
                acc = ACC + (ct * 4 + qt) * 4
                c = "0" if T == 0 else vr(acc, 4)
                e("v_mfma_f32_16x16x32_bf16 %s, %s, %s, %s" % (vr(acc, 4), vr(base + ct * 4, 4), ar((T * 4 + qt) * 4, 4), c))
            st.emit_one()
    st.wait(C_WO + 0)
    p5_reads(0, 0)
    for T in range(8):
        e("s_waitcnt lgkmcnt(0)")
        st.release(C_WO + T)
        p5_mfma(T, T & 1, [0, 1, 2, 3])
        if T + 1 < 8:
            st.wait(C_WO + T + 1)
            p5_reads(T + 1, (T + 1) & 1)
        p5_mfma(T, T & 1, [4, 5, 6])
    st.emit_all()
    e("s_nop 15")
    stamp()
    e("v_lshlrev_b32 v%d, 4, v%d" % (vA0, vLane))
    mx = [vS + 0, vS + 1]
    e("v_max_f32 v%d, |v%d|, |v%d|" % (mx[0], ACC, ACC + 1))
    e("v_max_f32 v%d, |v%d|, |v%d|" % (mx[1], ACC + 2, ACC + 3))
    for i in range(4, 112, 4):
        e("v_max3_f32 v%d, |v%d|, |v%d|, v%d" % (mx[0], ACC + i, ACC + i + 1, mx[0]))
        e("v_max3_f32 v%d, |v%d|, |v%d|, v%d" % (mx[1], ACC + i + 2, ACC + i + 3, mx[1]))
    e("v_max_f32 v%d, v%d, v%d" % (mx[0], mx[0], mx[1]))
    e("v_bfe_u32 v%d, v%d, 23, 8" % (mx[0], mx[0]))
    e("v_max_u32 v%d, 15, v%d" % (mx[0], mx[0]))
    e("v_min_u32 v%d, 0xfe, v%d" % (mx[0], mx[0]))
    e("v_sub_u32 v%d, 0x10c, v%d" % (vS + 2, mx[0]))
    e("v_lshlrev_b32 v%d, 23, v%d" % (vS + 2, vS + 2))
    e("v_subrev_u32 v%d, 14, v%d" % (vS + 3, mx[0]))
    e("v_lshlrev_b32 v%d, 23, v%d" % (vS + 3, vS + 3))
    e("v_lshlrev_b32 v%d, 2, v%d" % (vA1, vLane))
    e("s_add_u32 s%d, s%d, %d" % (sT, sPb, 14 * 1024))
    e("buffer_store_dword v%d, v%d, s[%d:%d], s%d offen%s" % (vS + 3, vA1, sWS, sWS + 3, sT, STPOL))
    for tp in range(14):
        acc = ACC + tp * 8
        for i in range(8):
            e("v_mul_f32 v%d, v%d, v%d" % (acc + i, acc + i, vS + 2))
        for i in range(4):
            e("v_cvt_pk_f16_f32 v%d, v%d, v%d" % (acc + i, acc + 2 * i, acc + 2 * i + 1))
        if tp % 4 == 0:
            e("s_add_u32 s%d, s%d, %d" % (sT, sPb, tp * 1024))
        e("buffer_store_dwordx4 %s, v%d, s[%d:%d], s%d offen offset:%d%s" % (vr(acc, 4), vA0, sWS, sWS + 3, sT, (tp % 4) * 1024, STPOL))
    e("s_waitcnt vmcnt(0)")
    stamp()
    if STAMPS:
        i = nstamp[0]; nstamp[0] += 2
        e("s_mov_b64 s[%d:%d], s[92:93]" % (64 + 2 * i, 65 + 2 * i))
        e("s_memrealtime s[%d:%d]" % (66 + 2 * i, 67 + 2 * i))
        e("s_waitcnt lgkmcnt(0)")
    stamp_flush()
    lab("L_main_end")
    e("s_endpgm")

def gen_reduce():
    L.append(".p2align 8")
    L.append(".globl reduce_kernel")
    L.append(".type reduce_kernel,@function")
    lab("reduce_kernel")
    e("s_cmp_ge_u32 s2, 224")
    e("s_cbranch_scc1 L_red_end")
    e("s_load_dwordx2 s[4:5], s[0:1], 40")
    e("s_load_dwordx2 s[6:7], s[0:1], 56")
    e("v_lshrrev_b32 v1, 6, v0")
    e("v_and_b32 v2, 63, v0")
    e("s_and_b32 s20, s2, 7")
    e("v_readfirstlane_b32 s21, v1")
    e("s_lshr_b32 s22, s2, 3")
    e("s_cmp_ge_u32 s22, 14")
    e("s_cselect_b32 s23, 1, 0")
    e("s_mul_i32 s24, s23, 14")
    e("s_sub_u32 s24, s22, s24")
    e("s_waitcnt lgkmcnt(0)")
    srd(8, 4, 8 * 128 * 448 * 2)
    srd(12, 6, 256 * 4 * 15 * 1024)
    e("s_lshl_b32 s25, s20, 1")
    e("s_add_u32 s25, s25, s23")
    e("s_lshl_b32 s25, s25, 6")
    e("s_add_u32 s25, s25, s21")
    e("s_mul_i32 s25, s25, 15")
    e("s_add_u32 s32, s25, 14")
    e("s_lshl_b32 s32, s32, 10")
    e("s_add_u32 s25, s25, s24")
    e("s_lshl_b32 s25, s25, 10")
    e("v_lshlrev_b32 v6, 2, v2")
    e("v_lshlrev_b32 v3, 4, v2")
    e("s_mov_b32 s31, 0xffff0000")
    e("s_nop 4")
    for h in range(16):
        e("s_add_u32 s26, s25, %d" % (h * 4 * 15 * 1024))
        e("buffer_load_dwordx4 v[%d:%d], v3, s[12:15], s26 offen" % (8 + 4 * h, 11 + 4 * h))
        e("s_add_u32 s26, s32, %d" % (h * 4 * 15 * 1024))
        e("buffer_load_dword v%d, v6, s[12:15], s26 offen" % (80 + h))
    e("s_and_b32 s27, s24, 1")
    e("s_lshl_b32 s27, s27, 1")
    e("s_lshr_b32 s28, s24, 1")
    e("s_lshl_b32 s29, s20, 7")
    e("s_lshl_b32 s30, s23, 6")
    e("s_add_u32 s29, s29, s30")
    e("s_lshl_b32 s30, s27, 4")
    e("s_add_u32 s29, s29, s30")
    e("s_mul_i32 s29, s29, 896")
    e("s_mul_i32 s30, s21, 224")
    e("s_add_u32 s29, s29, s30")
    e("s_lshl_b32 s30, s28, 5")
    e("s_add_u32 s29, s29, s30")
    e("v_and_b32 v4, 15, v2")
    e("v_mul_u32_u24 v4, 896, v4")
    e("v_lshrrev_b32 v5, 4, v2")
    e("v_lshl_add_u32 v4, v5, 3, v4")
    for i in range(8): e("v_mov_b32 v%d, 0" % (72 + i))
    for h in range(16):
        e("s_waitcnt vmcnt(%d)" % (30 - 2 * h))
        for i in range(4):
            e("v_fma_mix_f32 v%d, v%d, v%d, v%d op_sel_hi:[1,0,0]" % (72 + 2 * i, 8 + 4 * h + i, 80 + h, 72 + 2 * i))
            e("v_fma_mix_f32 v%d, v%d, v%d, v%d op_sel:[1,0,0] op_sel_hi:[1,0,0]" % (73 + 2 * i, 8 + 4 * h + i, 80 + h, 73 + 2 * i))
    e("v_cvt_pk_bf16_f32 v8, v72, v73")
    e("v_cvt_pk_bf16_f32 v9, v74, v75")
    e("v_cvt_pk_bf16_f32 v10, v76, v77")
    e("v_cvt_pk_bf16_f32 v11, v78, v79")
    e("buffer_store_dwordx2 v[8:9], v4, s[8:11], s29 offen")
    e("s_add_u32 s29, s29, %d" % (16 * 896))
    e("buffer_store_dwordx2 v[10:11], v4, s[8:11], s29 offen")
    e("s_waitcnt vmcnt(0)")
    lab("L_red_end")
    e("s_endpgm")

HEADER = """; Kernarg layout for this problem (64 bytes, ptrs only, base s[0:1]):
;   offset   0: d_in[0] x  shape=(8, 128, 448) dtype=bfloat16
;   offset   8: d_in[1] k_cache  shape=(8, 16, 512, 256) dtype=bfloat16
;   offset  16: d_in[2] v_cache  shape=(8, 16, 512, 256) dtype=bfloat16
;   offset  24: d_in[3] wq  shape=(448, 4096) dtype=bfloat16
;   offset  32: d_in[4] wo  shape=(4096, 448) dtype=bfloat16
;   offset  40: d_out     shape=(8, 128, 448) dtype=bfloat16
;   offset  48: d_debug   256 bytes
;   offset  56: d_ws      268435456 bytes workspace
; generated by gen.py
; @launch kernel=%s_kernel grid=(256,1,1) block=(256,1,1) lds=%d
; @launch kernel=reduce_kernel grid=(224,1,1) block=(256,1,1) lds=0
.amdgcn_target "amdgcn-amd-amdhsa--gfx950"
.text
.globl %s_kernel
.p2align 8
.type %s_kernel,@function
""" % (NAME, LDS_TOTAL, NAME, NAME)

FOOTER = """.section .rodata,"a"
.p2align 6
.amdhsa_kernel %s_kernel
  .amdhsa_next_free_vgpr 384
  .amdhsa_next_free_sgpr 102
  .amdhsa_accum_offset 256
  .amdhsa_group_segment_fixed_size 0
  .amdhsa_kernarg_size 64
  .amdhsa_user_sgpr_count 2
  .amdhsa_user_sgpr_kernarg_segment_ptr 1
  .amdhsa_system_sgpr_workgroup_id_x 1
.end_amdhsa_kernel
.p2align 6
.amdhsa_kernel reduce_kernel
  .amdhsa_next_free_vgpr 96
  .amdhsa_next_free_sgpr 40
  .amdhsa_accum_offset 96
  .amdhsa_group_segment_fixed_size 0
  .amdhsa_kernarg_size 64
  .amdhsa_user_sgpr_count 2
  .amdhsa_user_sgpr_kernarg_segment_ptr 1
  .amdhsa_system_sgpr_workgroup_id_x 1
.end_amdhsa_kernel
""" % NAME

gen_main()
gen_reduce()
with open(OUT, "w") as f:
    f.write(HEADER + "\n".join(L) + "\n" + FOOTER)
print("wrote", OUT, len(L), "lines")
```

```python
import struct, sys, os
KVPOL = os.environ.get("KVPOL", " nt")
STPOL = os.environ.get("STPOL", "")

OUT = sys.argv[1] if len(sys.argv) > 1 else "standalone__mha_block_cached__near_ridge.s"
NAME = "standalone__mha_block_cached__near_ridge"

L = []
def e(s): L.append("    " + s)
def lab(s): L.append(s + ":")
def cm(s): L.append("    ; " + s)

def f32bits(x): return struct.unpack("<I", struct.pack("<f", x))[0]

RING = 24576
SH = 4 * RING
LDS_TOTAL = 163840

sX, sK, sV, sWQ, sWO, sWS = 20, 24, 28, 32, 36, 40
sW = 44
sRing = 45
sXb, sWQb, sKb, sVb, sWOb, sPb = 46, 47, 48, 49, 50, 51
sT = 52
sC = 53
sB, sH, sHalf = 54, 55, 56
sT2 = 57
sMask = 58
sKc = [96, 97, 98, 99]

vLane = 1
vQ32 = 2
vHf = 3
vT0, vT1, vT2, vT3 = 4, 5, 6, 7
vXK = [8, 9, 10, 11]
vKA = [12, 13, 14, 15]
vTR = [16, 17]
vWOr = 18
vDX = [19, 20]
vDWQ = 21
vDK = [22, 23]
vDV = 24
vDWO = [25, 26, 27, 28, 29, 30, 31]
vA0, vA1, vA2, vA3, vA4, vA5, vA6, vA7 = 32, 33, 34, 35, 36, 37, 38, 39
vS = 40
FB = 64
ACC = 128

def vr(b, n): return "v[%d:%d]" % (b, b + n - 1)
def ar(b, n): return "a[%d:%d]" % (b, b + n - 1)

class Stream:
    def __init__(self):
        self.chunks = []
        self.vm_issued = 0
        self.last_instr = {}
        self.pending = []
        self.next_chunk = 0
        self.pos = 0
    def add(self, kind, idx, size):
        if self.pos + size > RING:
            self.pos = 0
        self.chunks.append(dict(kind=kind, idx=idx, size=size, off=self.pos))
        self.pos += size
    def dep(self, c):
        a = self.chunks[c]
        for p in range(c - 1, -1, -1):
            b = self.chunks[p]
            if a['off'] < b['off'] + b['size'] and b['off'] < a['off'] + a['size']:
                return p
        return -1
    def release(self, consumed):
        while self.next_chunk < len(self.chunks) and self.dep(self.next_chunk) <= consumed:
            c = self.next_chunk
            n = self.chunks[c]['size'] // 1024
            for i in range(n):
                self.pending.append((c, i))
            self.next_chunk += 1
    def emit_one(self):
        if not self.pending:
            return False
        c, n = self.pending.pop(0)
        ch = self.chunks[c]
        emit_dma(ch['kind'], ch['idx'], n, ch['off'] + n * 1024)
        self.vm_issued += 1
        self.last_instr[c] = self.vm_issued
        return True
    def emit_all(self):
        while self.emit_one():
            pass
    def wait(self, c):
        while any(p[0] <= c for p in self.pending):
            self.emit_one()
        n = self.vm_issued - self.last_instr[c]
        e("s_waitcnt vmcnt(%d)" % n)

def emit_dma(kind, idx, n, ringoff):
    e("s_add_u32 m0, s%d, %d" % (sRing, ringoff))
    if kind == 'wq':
        e("s_add_u32 s%d, s%d, %d" % (sT, sWQb, (32 * idx + 8 * n) * 8192))
        e("buffer_load_dwordx4 v%d, s[%d:%d], s%d offen lds" % (vDWQ, sWQ, sWQ + 3, sT))
    elif kind == 'k':
        kt, db = idx
        e("s_add_u32 s%d, s%d, %d" % (sT, sKc[db], (32 * kt + 8 * n) * 512))
        e("buffer_load_dwordx4 v%d, s[%d:%d], s%d offen%s lds" % (vDK[n & 1], sK, sK + 3, sT, KVPOL))
    elif kind == 'v':
        e("s_add_u32 s%d, s%d, %d" % (sT, sVb, (32 * idx + 8 * n) * 512))
        e("buffer_load_dwordx4 v%d, s[%d:%d], s%d offen%s lds" % (vDV, sV, sV + 3, sT, KVPOL))
    elif kind == 'wo':
        e("s_add_u32 s%d, s%d, %d" % (sT, sWOb, (32 * idx) * 896))
        e("buffer_load_dwordx4 v%d, s[%d:%d], s%d offen lds" % (vDWO[n], sWO, sWO + 3, sT))
    else:
        raise ValueError(kind)

def srd(s, lo, nbytes):
    e("s_mov_b32 s%d, s%d" % (s, lo))
    e("s_and_b32 s%d, s%d, 0xffff" % (s + 1, lo + 1))
    e("s_mov_b32 s%d, %d" % (s + 2, nbytes))
    e("s_mov_b32 s%d, 0x00020000" % (s + 3))

import os
STAMPS = bool(os.environ.get("GEN_STAMPS"))
nstamp = [0]
def stamp():
    if not STAMPS: return
    i = nstamp[0]; nstamp[0] += 1
    e("s_memtime s[%d:%d]" % (64 + 2 * i, 65 + 2 * i))
    e("s_waitcnt lgkmcnt(0)")
def stamp_flush():
    if not STAMPS: return
    e("s_mov_b32 s%d, 0x10000000" % (sWS + 2))
    e("s_lshl_b32 s%d, s2, 2" % sT)
    e("s_add_u32 s%d, s%d, s%d" % (sT, sT, sW))
    e("s_lshl_b32 s%d, s%d, 8" % (sT, sT))
    e("s_add_u32 s%d, s%d, %d" % (sT, sT, 128 << 20))
    e("v_mov_b32 v%d, 0" % vA1)
    for i in range(nstamp[0]):
        e("v_mov_b32 v%d, s%d" % (vS, 64 + 2 * i))
        e("v_mov_b32 v%d, s%d" % (vS + 1, 65 + 2 * i))
        e("buffer_store_dwordx2 %s, v%d, s[%d:%d], s%d offen offset:%d" % (vr(vS, 2), vA1, sWS, sWS + 3, sT, 8 * i))
        e("s_nop 2")

def barrier():
    e("s_waitcnt lgkmcnt(0)")
    e("s_barrier")

def gen_main():
    lab(NAME + "_kernel")
    e("s_cmp_ge_u32 s2, 256")
    e("s_cbranch_scc1 L_main_end")
    stamp()
    if STAMPS:
        e("s_memrealtime s[92:93]")
        e("s_waitcnt lgkmcnt(0)")
    e("s_load_dwordx8 s[4:11], s[0:1], 0")
    e("s_load_dwordx8 s[12:19], s[0:1], 32")
    e("v_lshrrev_b32 v%d, 6, v0" % vT0)
    e("v_and_b32 v%d, 63, v0" % vLane)
    e("s_lshr_b32 s%d, s2, 5" % sB)
    e("v_readfirstlane_b32 s%d, v%d" % (sW, vT0))
    e("s_and_b32 s%d, s2, 7" % sH)
    e("s_lshl_b32 s%d, s%d, 1" % (sH, sH))
    e("s_lshr_b32 s%d, s2, 3" % sHalf)
    e("s_and_b32 s%d, s%d, 1" % (sT, sHalf))
    e("s_add_u32 s%d, s%d, s%d" % (sH, sH, sT))
    e("s_lshr_b32 s%d, s2, 4" % sHalf)
    e("s_and_b32 s%d, s%d, 1" % (sHalf, sHalf))
    e("s_mov_b32 s%d, 0x%08x" % (sC, f32bits(1.4426950408889634 / 16.0)))
    e("v_and_b32 v%d, 31, v%d" % (vQ32, vLane))
    e("v_lshrrev_b32 v%d, 5, v%d" % (vHf, vLane))
    e("s_mul_i32 s%d, s%d, %d" % (sRing, sW, RING))
    e("s_waitcnt lgkmcnt(0)")
    srd(sX, 4, 8 * 128 * 448 * 2)
    srd(sK, 6, 8 * 16 * 512 * 256 * 2)
    srd(sV, 8, 8 * 16 * 512 * 256 * 2)
    srd(sWQ, 10, 448 * 4096 * 2)
    srd(sWO, 12, 4096 * 448 * 2)
    srd(sWS, 18, 256 * 4 * 15 * 1024)
    if os.environ.get("NOSHARE"):
        e("s_cmp_eq_u32 s%d, 1" % sHalf)
        for i in range(2):
            e("s_cselect_b32 s60, s%d, s%d" % (sV + i, sK + i))
            e("s_cselect_b32 s61, s%d, s%d" % (sK + i, sV + i))
            e("s_mov_b32 s%d, s60" % (sK + i))
            e("s_mov_b32 s%d, s61" % (sV + i))
    e("s_lshl_b32 s%d, s%d, 1" % (sT, sB))
    e("s_add_u32 s%d, s%d, s%d" % (sT, sT, sHalf))
    e("s_mul_i32 s%d, s%d, %d" % (sXb, sT, 64 * 896))
    e("s_lshl_b32 s%d, s%d, 9" % (sWQb, sH))
    e("s_lshl_b32 s%d, s%d, 7" % (sT, sW))
    e("s_add_u32 s%d, s%d, s%d" % (sWQb, sWQb, sT))
    e("s_lshl_b32 s%d, s%d, 4" % (sT, sB))
    e("s_add_u32 s%d, s%d, s%d" % (sT, sT, sH))
    e("s_lshl_b32 s%d, s%d, 18" % (sT, sT))
    e("s_lshl_b32 s%d, s%d, 16" % (sT2, sW))
    e("s_add_u32 s%d, s%d, s%d" % (sKb, sT, sT2))
    e("s_lshl_b32 s%d, s%d, 7" % (sT2, sW))
    e("s_add_u32 s%d, s%d, s%d" % (sVb, sT, sT2))
    for db in range(4):
        e("s_add_u32 s%d, s%d, %d" % (sT2, sW, db))
        e("s_and_b32 s%d, s%d, 3" % (sT2, sT2))
        e("s_lshl_b32 s%d, s%d, 7" % (sT2, sT2))
        e("s_add_u32 s%d, s%d, s%d" % (sKc[db], sKb, sT2))
    e("s_mul_i32 s%d, s%d, %d" % (sWOb, sH, 256 * 896))
    e("s_mul_i32 s%d, s%d, 224" % (sT, sW))
    e("s_add_u32 s%d, s%d, s%d" % (sWOb, sWOb, sT))
    e("s_lshl_b32 s%d, s2, 2" % sT)
    e("s_add_u32 s%d, s%d, s%d" % (sT, sT, sW))
    e("s_mul_i32 s%d, s%d, %d" % (sPb, sT, 15 * 1024))

    cm("DMA voffsets")
    r8, p8 = vT0, vT1
    e("v_lshrrev_b32 v%d, 3, v%d" % (r8, vLane))
    e("v_and_b32 v%d, 7, v%d" % (p8, vLane))
    e("v_lshrrev_b32 v%d, 1, v%d" % (vT2, r8))
    e("v_xor_b32 v%d, v%d, v%d" % (vT3, p8, vT2))
    e("v_lshlrev_b32 v%d, 4, v%d" % (vA0, vT3))
    e("v_xor_b32 v%d, 64, v%d" % (vA1, vA0))
    e("v_mul_u32_u24 v%d, 896, v%d" % (vA2, r8))
    e("v_add_u32 v%d, v%d, v%d" % (vDX[0], vA2, vA0))
    e("v_add_u32 v%d, v%d, v%d" % (vDX[1], vA2, vA1))
    e("v_lshlrev_b32 v%d, 9, v%d" % (vA2, r8))
    e("v_add_u32 v%d, v%d, v%d" % (vDK[0], vA2, vA0))
    e("v_add_u32 v%d, v%d, v%d" % (vDK[1], vA2, vA1))
    e("v_and_b32 v%d, 1, v%d" % (vT3, vT2))
    e("v_lshlrev_b32 v%d, 2, v%d" % (vT3, vT3))
    e("v_xor_b32 v%d, v%d, v%d" % (vT3, p8, vT3))
    e("v_lshlrev_b32 v%d, 4, v%d" % (vT3, vT3))
    e("v_add_u32 v%d, v%d, v%d" % (vDV, vA2, vT3))
    e("v_lshlrev_b32 v%d, 13, v%d" % (vA2, r8))
    e("v_add_u32 v%d, v%d, v%d" % (vDWQ, vA2, vT3))
    for n in range(7):
        e("v_add_u32 v%d, %d, v%d" % (vT0, 64 * n, vLane))
        e("v_mul_u32_u24 v%d, 4682, v%d" % (vT1, vT0))
        e("v_lshrrev_b32 v%d, 16, v%d" % (vT1, vT1))
        e("v_mul_u32_u24 v%d, 14, v%d" % (vT2, vT1))
        e("v_sub_u32 v%d, v%d, v%d" % (vT2, vT0, vT2))
        e("v_mul_u32_u24 v%d, 896, v%d" % (vT1, vT1))
        e("v_lshlrev_b32 v%d, 4, v%d" % (vT2, vT2))
        e("v_add_u32 v%d, v%d, v%d" % (vDWO[n], vT1, vT2))
    e("s_nop 4")

    st = Stream()
    for j in range(14): st.add('wq', j, 4096)
    for kt in range(4):
        for db in range(4): st.add('k', (kt, db), 4096)
    for j in range(16): st.add('v', j, 4096)
    for t in range(8): st.add('wo', t, 7168)
    C_WQ, C_K, C_V, C_WO = 0, 14, 30, 46

    cm("L2 warm-up prefetch (wq)")
    e("s_lshl_b32 s60, s%d, 1" % sB)
    e("s_add_u32 s60, s60, s%d" % sHalf)
    e("s_mul_i32 s62, s60, 28")
    e("s_mul_i32 s63, s%d, 7" % sW)
    e("s_add_u32 s62, s62, s63")
    e("s_lshl_b32 s62, s62, 13")
    e("s_lshl_b32 s63, s%d, 9" % sH)
    e("s_add_u32 s62, s62, s63")
    e("v_lshlrev_b32 v%d, 13, v%d" % (vT0, vHf))
    e("v_lshl_add_u32 v%d, v%d, 4, v%d" % (vT0, vQ32, vT0))
    for k in range(4):
        e("s_add_u32 s100, s62, %d" % (min(k * 2, 5) * 8192))
        e("buffer_load_dwordx4 v[%d:%d], v%d, s[%d:%d], s100 offen" % (ACC + 64 + 4 * k, ACC + 64 + 4 * k + 3, vT0, sWQ, sWQ + 3))
    st.vm_issued += 4
    e("s_lshl_b32 s63, s%d, 8" % sH)
    e("s_lshl_b32 s100, s60, 4")
    e("s_add_u32 s63, s63, s100")
    e("s_mul_i32 s63, s63, 896")
    e("s_mul_i32 s100, s%d, 3584" % sW)
    e("s_add_u32 s101, s63, s100")
    cm("x tile DMA")
    e("s_mul_i32 s%d, s%d, 14" % (sT2, sW))
    for k in range(14):
        e("s_add_u32 s60, s%d, %d" % (sT2, k))
        e("s_lshr_b32 s61, s60, 3")
        e("s_and_b32 s62, s60, 7")
        e("s_lshl_b32 s63, s60, 10")
        e("s_add_u32 m0, s63, %d" % SH)
        e("s_mul_i32 s63, s62, %d" % (8 * 896))
        e("s_lshl_b32 s61, s61, 7")
        e("s_add_u32 s63, s63, s61")
        e("s_add_u32 s63, s63, s%d" % sXb)
        e("buffer_load_dwordx4 v%d, s[%d:%d], s63 offen lds" % (vDX[k & 1], sX, sX + 3))
        st.vm_issued += 1
    x_last = st.vm_issued
    st.release(-1)
    st.emit_all()

    cm("LDS read address regs")
    e("v_lshrrev_b32 v%d, 1, v%d" % (vT0, vQ32))
    e("v_and_b32 v%d, 7, v%d" % (vT0, vT0))
    e("v_lshlrev_b32 v%d, 7, v%d" % (vT1, vQ32))
    for k in range(4):
        e("v_add_u32 v%d, %d, v%d" % (vT2, 2 * k, vHf))
        e("v_xor_b32 v%d, v%d, v%d" % (vT2, vT2, vT0))
        e("v_lshl_add_u32 v%d, v%d, 4, v%d" % (vT2, vT2, vT1))
        e("v_add_u32 v%d, %d, v%d" % (vXK[k], SH, vT2))
        e("v_add_u32 v%d, s%d, v%d" % (vKA[k], sRing, vT2))
    e("v_lshrrev_b32 v%d, 4, v%d" % (vT0, vLane))
    e("v_and_b32 v%d, 1, v%d" % (vT0, vT0))
    e("v_and_b32 v%d, 15, v%d" % (vT1, vLane))
    e("v_lshrrev_b32 v%d, 2, v%d" % (vT2, vT1))
    e("v_and_b32 v%d, 3, v%d" % (vT3, vT1))
    e("v_lshl_add_u32 v%d, v%d, 3, v%d" % (vA0, vHf, vT2))
    e("v_lshlrev_b32 v%d, 7, v%d" % (vA0, vA0))
    e("v_lshrrev_b32 v%d, 1, v%d" % (vA1, vT3))
    e("v_lshl_add_u32 v%d, v%d, 1, v%d" % (vA1, vT0, vA1))
    e("v_lshrrev_b32 v%d, 1, v%d" % (vA2, vT2))
    e("v_lshlrev_b32 v%d, 2, v%d" % (vA2, vA2))
    e("v_xor_b32 v%d, v%d, v%d" % (vA1, vA1, vA2))
    e("v_lshl_add_u32 v%d, v%d, 4, v%d" % (vA0, vA1, vA0))
    e("v_and_b32 v%d, 1, v%d" % (vA1, vT3))
    e("v_lshl_add_u32 v%d, v%d, 3, v%d" % (vA0, vA1, vA0))
    e("v_add_u32 v%d, s%d, v%d" % (vTR[0], sRing, vA0))
    e("v_xor_b32 v%d, 64, v%d" % (vTR[1], vTR[0]))
    e("v_lshrrev_b32 v%d, 4, v%d" % (vA0, vLane))
    e("v_lshl_add_u32 v%d, v%d, 2, v%d" % (vA0, vA0, vT2))
    e("v_mul_u32_u24 v%d, 224, v%d" % (vA0, vA0))
    e("v_lshl_add_u32 v%d, v%d, 3, v%d" % (vA0, vT3, vA0))
    e("v_add_u32 v%d, s%d, v%d" % (vWOr, sRing, vA0))

    e("s_waitcnt vmcnt(%d)" % (st.vm_issued - x_last))
    e("s_barrier")

    stamp()
    cm("==== phase 1: Q^T = wq^T x^T ====")
    def p1_reads(j, buf):
        base = FB + buf * 32
        off = st.chunks[C_WQ + j]['off']
        for ks in range(2):
            for D in range(2):
                for a in range(2):
                    r = base + (ks * 2 + D) * 4 + a * 2
                    e("ds_read_b64_tr_b16 %s, v%d offset:%d" % (vr(r, 2), vTR[D], off + (16 * ks + 4 * a) * 128))
            s = 2 * j + ks
            for t in range(2):
                r = base + 16 + (ks * 2 + t) * 4
                e("ds_read_b128 %s, v%d offset:%d" % (vr(r, 4), vXK[s & 3], (s >> 2) * 8192 + t * 4096))
    def p1_mfma(j, buf, half):
        base = FB + buf * 32
        ks = half
        for D in range(2):
            for t in range(2):
                acc = ACC + (D * 2 + t) * 16
                c = "0" if (j == 0 and ks == 0) else vr(acc, 16)
                e("v_mfma_f32_32x32x16_bf16 %s, %s, %s, %s" % (vr(acc, 16), vr(base + (ks * 2 + D) * 4, 4), vr(base + 16 + (ks * 2 + t) * 4, 4), c))
                if (D * 2 + t) % 2 == 1:
                    st.emit_one()
    st.wait(C_WQ + 0)
    p1_reads(0, 0)
    for j in range(14):
        e("s_waitcnt lgkmcnt(0)")
        st.release(C_WQ + j)
        p1_mfma(j, j & 1, 0)
        if j + 1 < 14:
            st.wait(C_WQ + j + 1)
            p1_reads(j + 1, (j + 1) & 1)
        p1_mfma(j, j & 1, 1)
    st.emit_all()
    stamp()
    e("v_lshlrev_b32 v%d, 4, v%d" % (vT1, vLane))
    for k in range(4):
        e("s_add_u32 s100, s101, %d" % (min(k * 1024, 2560)))
        e("buffer_load_dwordx4 v[%d:%d], v%d, s[%d:%d], s100 offen" % (ACC + 64 + 4 * k, ACC + 64 + 4 * k + 3, vT1, sWO, sWO + 3))
    st.vm_issued += 4
    e("s_barrier")
    e("s_nop 15")
    e("s_lshr_b32 s%d, s%d, 1" % (sT, sW))
    e("s_lshl_b32 s%d, s%d, 8" % (sT, sT))
    e("s_add_u32 s%d, s%d, %d" % (sT, sT, SH))
    e("s_and_b32 s%d, s%d, 1" % (sT2, sW))
    e("s_lshl_b32 s%d, s%d, 3" % (sT2, sT2))
    e("v_and_b32 v%d, 15, v%d" % (vT0, vQ32))
    e("v_xor_b32 v%d, s%d, v%d" % (vT0, sT2, vT0))
    e("v_lshlrev_b32 v%d, 4, v%d" % (vT0, vT0))
    e("v_lshl_add_u32 v%d, v%d, 9, v%d" % (vT0, vQ32, vT0))
    e("v_lshl_add_u32 v%d, v%d, 3, v%d" % (vT0, vHf, vT0))
    e("v_add_u32 v%d, s%d, v%d" % (vA0, sT, vT0))
    for D in range(2):
        for t in range(2):
            acc = ACC + (D * 2 + t) * 16
            for g in range(4):
                e("v_cvt_pk_bf16_f32 v%d, v%d, v%d" % (vS + 0, acc + 4 * g, acc + 4 * g + 1))
                e("v_cvt_pk_bf16_f32 v%d, v%d, v%d" % (vS + 1, acc + 4 * g + 2, acc + 4 * g + 3))
                e("v_xor_b32 v%d, %d, v%d" % (vA1, (4 * D + g) << 4, vA0))
                e("ds_write_b64 v%d, %s offset:%d" % (vA1, vr(vS, 2), t * 16384))
    barrier()
    e("v_and_b32 v%d, 15, v%d" % (vT0, vQ32))
    e("v_xor_b32 v%d, v%d, v%d" % (vT0, vHf, vT0))
    e("v_lshlrev_b32 v%d, 4, v%d" % (vT0, vT0))
    e("v_lshl_add_u32 v%d, v%d, 9, v%d" % (vT0, vQ32, vT0))
    e("v_add_u32 v%d, %d, v%d" % (vA0, SH, vT0))
    for db in range(4):
        e("s_add_u32 s%d, s%d, %d" % (sT2, sW, db))
        e("s_and_b32 s%d, s%d, 3" % (sT2, sT2))
        e("s_lshl_b32 s%d, s%d, 7" % (sT2, sT2))
        e("v_xor_b32 v%d, s%d, v%d" % (vA1, sT2, vA0))
        for k in range(4):
            sidx = 4 * db + k
            e("v_xor_b32 v%d, %d, v%d" % (vA2, k << 5, vA1))
            for t in range(2):
                e("ds_read_b128 %s, v%d offset:%d" % (ar((sidx * 2 + t) * 4, 4), vA2, t * 16384))
        e("s_waitcnt lgkmcnt(0)")

    stamp()
    cm("==== phase 2 ====")
    def p2_reads(c, buf):
        base = FB + buf * 32
        off = st.chunks[C_K + c]['off']
        for k in range(4):
            e("ds_read_b128 %s, v%d offset:%d" % (vr(base + 4 * k, 4), vKA[k], off))
    def p2_mfma(c, buf, half):
        base = FB + buf * 32
        kt, db = divmod(c, 4)
        for k in range(2 * half, 2 * half + 2):
            s = 4 * db + k
            for t in range(2):
                acc = ACC + (kt * 2 + t) * 16
                cc = "0" if s == 0 else vr(acc, 16)
                e("v_mfma_f32_32x32x16_bf16 %s, %s, %s, %s" % (vr(acc, 16), vr(base + 4 * k, 4), ar((s * 2 + t) * 4, 4), cc))
            st.emit_one()
    st.wait(C_K + 0)
    p2_reads(0, 0)
    for c in range(16):
        e("s_waitcnt lgkmcnt(0)")
        st.release(C_K + c)
        p2_mfma(c, c & 1, 0)
        if c + 1 < 16:
            st.wait(C_K + c + 1)
            p2_reads(c + 1, (c + 1) & 1)
        p2_mfma(c, c & 1, 1)
    st.emit_all()
    e("s_nop 15")

    stamp()
    cm("==== phase 3: softmax ====")
    e("s_mov_b32 s%d, 0xffff0000" % sMask)
    vM = [vS + 0, vS + 1]
    def accreg(kt, t, i): return ACC + (kt * 2 + t) * 16 + i
    for t in range(2):
        for kt in range(4):
            for i in range(0, 16, 2):
                a0, a1 = accreg(kt, t, i), accreg(kt, t, i + 1)
                e("v_cvt_pk_bf16_f32 v%d, v%d, v%d" % (a1, a0, a1))
                e("v_lshlrev_b32 v%d, 16, v%d" % (a0, a1))
                e("v_and_b32 v%d, s%d, v%d" % (a1, sMask, a1))
    mreg = [vS + 0, vS + 2]
    lreg = [vS + 1, vS + 3]
    tmpm = [vS + 4, vS + 5]
    for t in range(2):
        vals = [accreg(kt, t, i) for kt in range(4) for i in range(16)]
        e("v_max_f32 v%d, v%d, v%d" % (mreg[t], vals[0], vals[1]))
        e("v_max_f32 v%d, v%d, v%d" % (tmpm[t], vals[2], vals[3]))
    for idx in range(4, 64, 4):
        for t in range(2):
            vals = [accreg(kt, t, i) for kt in range(4) for i in range(16)]
            e("v_max3_f32 v%d, v%d, v%d, v%d" % (mreg[t], mreg[t], vals[idx], vals[idx + 1]))
            e("v_max3_f32 v%d, v%d, v%d, v%d" % (tmpm[t], tmpm[t], vals[idx + 2], vals[idx + 3]))
    for t in range(2):
        e("v_max_f32 v%d, v%d, v%d" % (mreg[t], mreg[t], tmpm[t]))
    nmc = [vS + 6, vS + 7]
    for t in range(2):
        e("v_mul_f32 v%d, s%d, v%d" % (nmc[t], sC, mreg[t]))
    for kt in range(4):
        for i in range(16):
            for t in range(2):
                a = accreg(kt, t, i)
                e("v_fma_f32 v%d, v%d, s%d, -v%d" % (a, a, sC, nmc[t]))
            for t in range(2):
                a = accreg(kt, t, i)
                e("v_exp_f32 v%d, v%d" % (a, a))
    e("s_nop 0")
    sp = [[vS + 8, vS + 9], [vS + 10, vS + 11]]
    for t in range(2):
        vals = [accreg(kt, t, i) for kt in range(4) for i in range(16)]
        e("v_add_f32 v%d, v%d, v%d" % (sp[t][0], vals[0], vals[1]))
        e("v_add_f32 v%d, v%d, v%d" % (sp[t][1], vals[2], vals[3]))
    for idx in range(4, 64, 2):
        for t in range(2):
            vals = [accreg(kt, t, i) for kt in range(4) for i in range(16)]
            e("v_add_f32 v%d, v%d, v%d" % (sp[t][0], sp[t][0], vals[idx]))
            e("v_add_f32 v%d, v%d, v%d" % (sp[t][1], sp[t][1], vals[idx + 1]))
    for t in range(2):
        e("v_add_f32 v%d, v%d, v%d" % (lreg[t], sp[t][0], sp[t][1]))
    e("s_lshl_b32 s%d, s%d, 10" % (sT, sW))
    e("s_add_u32 s%d, s%d, %d" % (sT, sT, SH))
    e("v_lshlrev_b32 v%d, 3, v%d" % (vT0, vQ32))
    e("v_lshl_add_u32 v%d, v%d, 9, v%d" % (vT1, vHf, vT0))
    e("v_add_u32 v%d, s%d, v%d" % (vA0, sT, vT1))
    e("v_add_u32 v%d, %d, v%d" % (vA1, SH, vT0))
    for t in range(2):
        e("ds_write_b64 v%d, %s offset:%d" % (vA0, vr(mreg[t], 2), t * 256))
    barrier()
    ML = FB
    for t in range(2):
        for k in range(8):
            e("ds_read_b64 %s, v%d offset:%d" % (vr(ML + (t * 8 + k) * 2, 2), vA1, k * 512 + t * 256))
        e("s_waitcnt lgkmcnt(0)")
    barrier()
    fac = [vS + 12, vS + 13]
    for t in range(2):
        mm = vS + 14 + t
        ms = [ML + (t * 8 + k) * 2 for k in range(8)]
        e("v_max3_f32 v%d, v%d, v%d, v%d" % (mm, ms[0], ms[1], ms[2]))
        e("v_max3_f32 v%d, v%d, v%d, v%d" % (mm, mm, ms[3], ms[4]))
        e("v_max3_f32 v%d, v%d, v%d, v%d" % (mm, mm, ms[5], ms[6]))
        e("v_max_f32 v%d, v%d, v%d" % (mm, mm, ms[7]))
        for k in range(8):
            e("v_sub_f32 v%d, v%d, v%d" % (ms[k], ms[k], mm))
            e("v_mul_f32 v%d, s%d, v%d" % (ms[k], sC, ms[k]))
            e("v_exp_f32 v%d, v%d" % (ms[k], ms[k]))
        e("s_nop 0")
        lg = vS + 16 + t
        e("v_mul_f32 v%d, v%d, v%d" % (lg, ms[0], ms[0] + 1))
        for k in range(1, 8):
            e("v_fmac_f32 v%d, v%d, v%d" % (lg, ms[k], ms[k] + 1))
        e("v_rcp_f32 v%d, v%d" % (lg, lg))
        e("v_sub_f32 v%d, v%d, v%d" % (fac[t], mreg[t], mm))
        e("v_mul_f32 v%d, s%d, v%d" % (fac[t], sC, fac[t]))
        e("v_exp_f32 v%d, v%d" % (fac[t], fac[t]))
        e("s_nop 0")
        e("v_mul_f32 v%d, v%d, v%d" % (fac[t], fac[t], lg))
    e("s_lshl_b32 s%d, s%d, 8" % (sT, sW))
    e("s_add_u32 s%d, s%d, %d" % (sT, sT, SH))
    e("v_and_b32 v%d, 15, v%d" % (vT0, vQ32))
    e("v_lshlrev_b32 v%d, 4, v%d" % (vT0, vT0))
    e("v_lshl_add_u32 v%d, v%d, 10, v%d" % (vT0, vQ32, vT0))
    e("v_lshl_add_u32 v%d, v%d, 3, v%d" % (vT1, vHf, vT0))
    e("v_add_u32 v%d, s%d, v%d" % (vA0, sT, vT1))
    for kt in range(4):
        for g in range(4):
            e("v_xor_b32 v%d, %d, v%d" % (vA1, (4 * kt + g) << 4, vA0))
            for t in range(2):
                a = accreg(kt, t, 4 * g)
                for i in range(4):
                    e("v_mul_f32 v%d, v%d, v%d" % (a + i, a + i, fac[t]))
                pk = vS + 18 + 2 * t
                e("v_cvt_pk_bf16_f32 v%d, v%d, v%d" % (pk, a, a + 1))
                e("v_cvt_pk_bf16_f32 v%d, v%d, v%d" % (pk + 1, a + 2, a + 3))
                e("ds_write_b64 v%d, %s offset:%d" % (vA1, vr(pk, 2), t * 32768))
    vPR = [vS + 0, vS + 1, vS + 2, vS + 3, vS + 4, vS + 5, vS + 6, vS + 7]
    e("v_and_b32 v%d, 15, v%d" % (vT0, vQ32))
    e("v_xor_b32 v%d, v%d, v%d" % (vT0, vHf, vT0))
    e("v_lshlrev_b32 v%d, 4, v%d" % (vT0, vT0))
    e("v_lshl_add_u32 v%d, v%d, 10, v%d" % (vT0, vQ32, vT0))
    e("v_add_u32 v%d, %d, v%d" % (vA2, SH, vT0))
    e("s_waitcnt lgkmcnt(0)")
    for k in range(8):
        e("v_xor_b32 v%d, %d, v%d" % (vPR[k], (2 * k) << 4, vA2))
    e("s_barrier")

    stamp()
    cm("==== phase 4 ====")
    def p4_reads(j, buf):
        base = FB + buf * 32
        off = st.chunks[C_V + j]['off']
        for ks in range(2):
            for D in range(2):
                for a in range(2):
                    r = base + (ks * 2 + D) * 4 + a * 2
                    e("ds_read_b64_tr_b16 %s, v%d offset:%d" % (vr(r, 2), vTR[D], off + (16 * ks + 4 * a) * 128))
            s = 2 * j + ks
            for t in range(2):
                r = base + 16 + (ks * 2 + t) * 4
                e("ds_read_b128 %s, v%d offset:%d" % (vr(r, 4), vPR[s & 7], (s >> 3) * 256 + t * 32768))
    def p4_mfma(j, buf, half):
        base = FB + buf * 32
        ks = half
        for D in range(2):
            for t in range(2):
                acc = ACC + (D * 2 + t) * 16
                c = "0" if (j == 0 and ks == 0) else vr(acc, 16)
                e("v_mfma_f32_32x32x16_bf16 %s, %s, %s, %s" % (vr(acc, 16), vr(base + (ks * 2 + D) * 4, 4), vr(base + 16 + (ks * 2 + t) * 4, 4), c))
                if (D * 2 + t) % 2 == 1:
                    st.emit_one()
    st.wait(C_V + 0)
    p4_reads(0, 0)
    for j in range(16):
        e("s_waitcnt lgkmcnt(0)")
        st.release(C_V + j)
        p4_mfma(j, j & 1, 0)
        if j + 1 < 16:
            st.wait(C_V + j + 1)
            p4_reads(j + 1, (j + 1) & 1)
        p4_mfma(j, j & 1, 1)
    st.emit_all()
    stamp()
    e("s_barrier")
    e("s_nop 15")
    e("s_lshr_b32 s%d, s%d, 1" % (sT, sW))
    e("s_lshl_b32 s%d, s%d, 8" % (sT, sT))
    e("s_add_u32 s%d, s%d, %d" % (sT, sT, SH))
    e("s_and_b32 s%d, s%d, 1" % (sT2, sW))
    e("s_lshl_b32 s%d, s%d, 3" % (sT2, sT2))
    e("v_and_b32 v%d, 15, v%d" % (vT0, vQ32))
    e("v_xor_b32 v%d, v%d, v%d" % (vT0, vHf, vT0))
    e("v_xor_b32 v%d, s%d, v%d" % (vT0, sT2, vT0))
    e("v_lshlrev_b32 v%d, 4, v%d" % (vT0, vT0))
    e("v_lshl_add_u32 v%d, v%d, 9, v%d" % (vT0, vQ32, vT0))
    e("v_add_u32 v%d, s%d, v%d" % (vA0, sT, vT0))
    for D in range(2):
        for t in range(2):
            acc = ACC + (D * 2 + t) * 16
            for g in range(4):
                e("v_cvt_pk_bf16_f32 v%d, v%d, v%d" % (vS + 8, acc + 4 * g, acc + 4 * g + 1))
                e("v_cvt_pk_bf16_f32 v%d, v%d, v%d" % (vS + 9, acc + 4 * g + 2, acc + 4 * g + 3))
                e("v_xor_b32 v%d, %d, v%d" % (vA1, (4 * D + 2 * (g & 1)) << 4, vA0))
                e("ds_write_b64 v%d, %s offset:%d" % (vA1, vr(vS + 8, 2), t * 16384 + (g >> 1) * 8))
    barrier()
    e("v_and_b32 v%d, 15, v%d" % (vT0, vLane))
    e("v_lshrrev_b32 v%d, 4, v%d" % (vT1, vLane))
    e("v_xor_b32 v%d, v%d, v%d" % (vT1, vT1, vT0))
    e("v_lshlrev_b32 v%d, 4, v%d" % (vT1, vT1))
    e("v_lshl_add_u32 v%d, v%d, 9, v%d" % (vT1, vT0, vT1))
    e("v_add_u32 v%d, %d, v%d" % (vA0, SH, vT1))
    for T3 in range(4):
        e("v_xor_b32 v%d, %d, v%d" % (vA1, (4 * T3) << 4, vA0))
        for Th in range(2):
            T = Th * 4 + T3
            for qt in range(4):
                e("ds_read_b128 %s, v%d offset:%d" % (ar((T * 4 + qt) * 4, 4), vA1, qt * 8192 + Th * 256))
        e("s_waitcnt lgkmcnt(0)")

    stamp()
    cm("==== phase 5 ====")
    def p5_reads(T, buf):
        base = FB + buf * 32
        off = st.chunks[C_WO + T]['off']
        for ct in range(7):
            for a in range(2):
                e("ds_read_b64_tr_b16 %s, v%d offset:%d" % (vr(base + ct * 4 + a * 2, 2), vWOr, off + a * 16 * 224 + ct * 32))
    def p5_mfma(T, buf, cts):
        base = FB + buf * 32
        for ct in cts:
            for qt in range(4):
                acc = ACC + (ct * 4 + qt) * 4
                c = "0" if T == 0 else vr(acc, 4)
                e("v_mfma_f32_16x16x32_bf16 %s, %s, %s, %s" % (vr(acc, 4), vr(base + ct * 4, 4), ar((T * 4 + qt) * 4, 4), c))
            st.emit_one()
    st.wait(C_WO + 0)
    p5_reads(0, 0)
    for T in range(8):
        e("s_waitcnt lgkmcnt(0)")
        st.release(C_WO + T)
        p5_mfma(T, T & 1, [0, 1, 2, 3])
        if T + 1 < 8:
            st.wait(C_WO + T + 1)
            p5_reads(T + 1, (T + 1) & 1)
        p5_mfma(T, T & 1, [4, 5, 6])
    st.emit_all()
    e("s_nop 15")
    stamp()
    e("v_lshlrev_b32 v%d, 4, v%d" % (vA0, vLane))
    mx = [vS + 0, vS + 1]
    e("v_max_f32 v%d, |v%d|, |v%d|" % (mx[0], ACC, ACC + 1))
    e("v_max_f32 v%d, |v%d|, |v%d|" % (mx[1], ACC + 2, ACC + 3))
    for i in range(4, 112, 4):
        e("v_max3_f32 v%d, |v%d|, |v%d|, v%d" % (mx[0], ACC + i, ACC + i + 1, mx[0]))
        e("v_max3_f32 v%d, |v%d|, |v%d|, v%d" % (mx[1], ACC + i + 2, ACC + i + 3, mx[1]))
    e("v_max_f32 v%d, v%d, v%d" % (mx[0], mx[0], mx[1]))
    e("v_bfe_u32 v%d, v%d, 23, 8" % (mx[0], mx[0]))
    e("v_max_u32 v%d, 15, v%d" % (mx[0], mx[0]))
    e("v_min_u32 v%d, 0xfe, v%d" % (mx[0], mx[0]))
    e("v_sub_u32 v%d, 0x10c, v%d" % (vS + 2, mx[0]))
    e("v_lshlrev_b32 v%d, 23, v%d" % (vS + 2, vS + 2))
    e("v_subrev_u32 v%d, 14, v%d" % (vS + 3, mx[0]))
    e("v_lshlrev_b32 v%d, 23, v%d" % (vS + 3, vS + 3))
    e("v_lshlrev_b32 v%d, 2, v%d" % (vA1, vLane))
    e("s_add_u32 s%d, s%d, %d" % (sT, sPb, 14 * 1024))
    e("buffer_store_dword v%d, v%d, s[%d:%d], s%d offen%s" % (vS + 3, vA1, sWS, sWS + 3, sT, STPOL))
    for tp in range(14):
        acc = ACC + tp * 8
        for i in range(8):
            e("v_mul_f32 v%d, v%d, v%d" % (acc + i, acc + i, vS + 2))
        for i in range(4):
            e("v_cvt_pk_f16_f32 v%d, v%d, v%d" % (acc + i, acc + 2 * i, acc + 2 * i + 1))
        if tp % 4 == 0:
            e("s_add_u32 s%d, s%d, %d" % (sT, sPb, tp * 1024))
        e("buffer_store_dwordx4 %s, v%d, s[%d:%d], s%d offen offset:%d%s" % (vr(acc, 4), vA0, sWS, sWS + 3, sT, (tp % 4) * 1024, STPOL))
    e("s_waitcnt vmcnt(0)")
    stamp()
    if STAMPS:
        i = nstamp[0]; nstamp[0] += 2
        e("s_mov_b64 s[%d:%d], s[92:93]" % (64 + 2 * i, 65 + 2 * i))
        e("s_memrealtime s[%d:%d]" % (66 + 2 * i, 67 + 2 * i))
        e("s_waitcnt lgkmcnt(0)")
    stamp_flush()
    lab("L_main_end")
    e("s_endpgm")

def gen_reduce():
    L.append(".p2align 8")
    L.append(".globl reduce_kernel")
    L.append(".type reduce_kernel,@function")
    lab("reduce_kernel")
    e("s_cmp_ge_u32 s2, 224")
    e("s_cbranch_scc1 L_red_end")
    e("s_load_dwordx2 s[4:5], s[0:1], 40")
    e("s_load_dwordx2 s[6:7], s[0:1], 56")
    e("v_lshrrev_b32 v1, 6, v0")
    e("v_and_b32 v2, 63, v0")
    e("s_and_b32 s20, s2, 7")
    e("v_readfirstlane_b32 s21, v1")
    e("s_lshr_b32 s22, s2, 3")
    e("s_cmp_ge_u32 s22, 14")
    e("s_cselect_b32 s23, 1, 0")
    e("s_mul_i32 s24, s23, 14")
    e("s_sub_u32 s24, s22, s24")
    e("s_waitcnt lgkmcnt(0)")
    srd(8, 4, 8 * 128 * 448 * 2)
    srd(12, 6, 256 * 4 * 15 * 1024)
    e("s_lshl_b32 s25, s20, 1")
    e("s_add_u32 s25, s25, s23")
    e("s_lshl_b32 s25, s25, 6")
    e("s_add_u32 s25, s25, s21")
    e("s_mul_i32 s25, s25, 15")
    e("s_add_u32 s32, s25, 14")
    e("s_lshl_b32 s32, s32, 10")
    e("s_add_u32 s25, s25, s24")
    e("s_lshl_b32 s25, s25, 10")
    e("v_lshlrev_b32 v6, 2, v2")
    e("v_lshlrev_b32 v3, 4, v2")
    e("s_mov_b32 s31, 0xffff0000")
    e("s_nop 4")
    for h in range(16):
        e("s_add_u32 s26, s25, %d" % (h * 4 * 15 * 1024))
        e("buffer_load_dwordx4 v[%d:%d], v3, s[12:15], s26 offen" % (8 + 4 * h, 11 + 4 * h))
        e("s_add_u32 s26, s32, %d" % (h * 4 * 15 * 1024))
        e("buffer_load_dword v%d, v6, s[12:15], s26 offen" % (80 + h))
    e("s_and_b32 s27, s24, 1")
    e("s_lshl_b32 s27, s27, 1")
    e("s_lshr_b32 s28, s24, 1")
    e("s_lshl_b32 s29, s20, 7")
    e("s_lshl_b32 s30, s23, 6")
    e("s_add_u32 s29, s29, s30")
    e("s_lshl_b32 s30, s27, 4")
    e("s_add_u32 s29, s29, s30")
    e("s_mul_i32 s29, s29, 896")
    e("s_mul_i32 s30, s21, 224")
    e("s_add_u32 s29, s29, s30")
    e("s_lshl_b32 s30, s28, 5")
    e("s_add_u32 s29, s29, s30")
    e("v_and_b32 v4, 15, v2")
    e("v_mul_u32_u24 v4, 896, v4")
    e("v_lshrrev_b32 v5, 4, v2")
    e("v_lshl_add_u32 v4, v5, 3, v4")
    for i in range(8): e("v_mov_b32 v%d, 0" % (72 + i))
    for h in range(16):
        e("s_waitcnt vmcnt(%d)" % (30 - 2 * h))
        for i in range(4):
            e("v_fma_mix_f32 v%d, v%d, v%d, v%d op_sel_hi:[1,0,0]" % (72 + 2 * i, 8 + 4 * h + i, 80 + h, 72 + 2 * i))
            e("v_fma_mix_f32 v%d, v%d, v%d, v%d op_sel:[1,0,0] op_sel_hi:[1,0,0]" % (73 + 2 * i, 8 + 4 * h + i, 80 + h, 73 + 2 * i))
    e("v_cvt_pk_bf16_f32 v8, v72, v73")
    e("v_cvt_pk_bf16_f32 v9, v74, v75")
    e("v_cvt_pk_bf16_f32 v10, v76, v77")
    e("v_cvt_pk_bf16_f32 v11, v78, v79")
    e("buffer_store_dwordx2 v[8:9], v4, s[8:11], s29 offen")
    e("s_add_u32 s29, s29, %d" % (16 * 896))
    e("buffer_store_dwordx2 v[10:11], v4, s[8:11], s29 offen")
    e("s_waitcnt vmcnt(0)")
    lab("L_red_end")
    e("s_endpgm")

HEADER = """; Kernarg layout for this problem (64 bytes, ptrs only, base s[0:1]):
;   offset   0: d_in[0] x  shape=(8, 128, 448) dtype=bfloat16
;   offset   8: d_in[1] k_cache  shape=(8, 16, 512, 256) dtype=bfloat16
;   offset  16: d_in[2] v_cache  shape=(8, 16, 512, 256) dtype=bfloat16
;   offset  24: d_in[3] wq  shape=(448, 4096) dtype=bfloat16
;   offset  32: d_in[4] wo  shape=(4096, 448) dtype=bfloat16
;   offset  40: d_out     shape=(8, 128, 448) dtype=bfloat16
;   offset  48: d_debug   256 bytes
;   offset  56: d_ws      268435456 bytes workspace
; generated by gen.py
; @launch kernel=%s_kernel grid=(256,1,1) block=(256,1,1) lds=%d
; @launch kernel=reduce_kernel grid=(224,1,1) block=(256,1,1) lds=0
.amdgcn_target "amdgcn-amd-amdhsa--gfx950"
.text
.globl %s_kernel
.p2align 8
.type %s_kernel,@function
""" % (NAME, LDS_TOTAL, NAME, NAME)

FOOTER = """.section .rodata,"a"
.p2align 6
.amdhsa_kernel %s_kernel
  .amdhsa_next_free_vgpr 384
  .amdhsa_next_free_sgpr 102
  .amdhsa_accum_offset 256
  .amdhsa_group_segment_fixed_size 0
  .amdhsa_kernarg_size 64
  .amdhsa_user_sgpr_count 2
  .amdhsa_user_sgpr_kernarg_segment_ptr 1
  .amdhsa_system_sgpr_workgroup_id_x 1
.end_amdhsa_kernel
.p2align 6
.amdhsa_kernel reduce_kernel
  .amdhsa_next_free_vgpr 96
  .amdhsa_next_free_sgpr 40
  .amdhsa_accum_offset 96
  .amdhsa_group_segment_fixed_size 0
  .amdhsa_kernarg_size 64
  .amdhsa_user_sgpr_count 2
  .amdhsa_user_sgpr_kernarg_segment_ptr 1
  .amdhsa_system_sgpr_workgroup_id_x 1
.end_amdhsa_kernel
""" % NAME

gen_main()
gen_reduce()
with open(OUT, "w") as f:
    f.write(HEADER + "\n".join(L) + "\n" + FOOTER)
print("wrote", OUT, len(L), "lines")
```

```python
import struct, sys, os
KVPOL = os.environ.get("KVPOL", " nt")
STPOL = os.environ.get("STPOL", " sc1")

OUT = sys.argv[1] if len(sys.argv) > 1 else "standalone__mha_block_cached__near_ridge.s"
NAME = "standalone__mha_block_cached__near_ridge"

L = []
def e(s): L.append("    " + s)
def lab(s): L.append(s + ":")
def cm(s): L.append("    ; " + s)

def f32bits(x): return struct.unpack("<I", struct.pack("<f", x))[0]

RING = 24576
SH = 4 * RING
LDS_TOTAL = 163840

sX, sK, sV, sWQ, sWO, sWS = 20, 24, 28, 32, 36, 40
sW = 44
sRing = 45
sXb, sWQb, sKb, sVb, sWOb, sPb = 46, 47, 48, 49, 50, 51
sT = 52
sC = 53
sB, sH, sHalf = 54, 55, 56
sT2 = 57
sMask = 58
sKc = [96, 97, 98, 99]

vLane = 1
vQ32 = 2
vHf = 3
vT0, vT1, vT2, vT3 = 4, 5, 6, 7
vXK = [8, 9, 10, 11]
vKA = [12, 13, 14, 15]
vTR = [16, 17]
vWOr = 18
vDX = [19, 20]
vDWQ = 21
vDK = [22, 23]
vDV = 24
vDWO = [25, 26, 27, 28, 29, 30, 31]
vA0, vA1, vA2, vA3, vA4, vA5, vA6, vA7 = 32, 33, 34, 35, 36, 37, 38, 39
vS = 40
FB = 64
ACC = 128

def vr(b, n): return "v[%d:%d]" % (b, b + n - 1)
def ar(b, n): return "a[%d:%d]" % (b, b + n - 1)

class Stream:
    def __init__(self):
        self.chunks = []
        self.vm_issued = 0
        self.last_instr = {}
        self.pending = []
        self.next_chunk = 0
        self.pos = 0
    def add(self, kind, idx, size):
        if self.pos + size > RING:
            self.pos = 0
        self.chunks.append(dict(kind=kind, idx=idx, size=size, off=self.pos))
        self.pos += size
    def dep(self, c):
        a = self.chunks[c]
        for p in range(c - 1, -1, -1):
            b = self.chunks[p]
            if a['off'] < b['off'] + b['size'] and b['off'] < a['off'] + a['size']:
                return p
        return -1
    def release(self, consumed):
        while self.next_chunk < len(self.chunks) and self.dep(self.next_chunk) <= consumed:
            c = self.next_chunk
            n = self.chunks[c]['size'] // 1024
            for i in range(n):
                self.pending.append((c, i))
            self.next_chunk += 1
    def emit_one(self):
        if not self.pending:
            return False
        c, n = self.pending.pop(0)
        ch = self.chunks[c]
        emit_dma(ch['kind'], ch['idx'], n, ch['off'] + n * 1024)
        self.vm_issued += 1
        self.last_instr[c] = self.vm_issued
        return True
    def emit_all(self):
        while self.emit_one():
            pass
    def wait(self, c):
        while any(p[0] <= c for p in self.pending):
            self.emit_one()
        n = self.vm_issued - self.last_instr[c]
        e("s_waitcnt vmcnt(%d)" % n)

def emit_dma(kind, idx, n, ringoff):
    e("s_add_u32 m0, s%d, %d" % (sRing, ringoff))
    if kind == 'wq':
        e("s_add_u32 s%d, s%d, %d" % (sT, sWQb, (32 * idx + 8 * n) * 8192))
        e("buffer_load_dwordx4 v%d, s[%d:%d], s%d offen lds" % (vDWQ, sWQ, sWQ + 3, sT))
    elif kind == 'k':
        kt, db = idx
        e("s_add_u32 s%d, s%d, %d" % (sT, sKc[db], (32 * kt + 8 * n) * 512))
        e("buffer_load_dwordx4 v%d, s[%d:%d], s%d offen%s lds" % (vDK[n & 1], sK, sK + 3, sT, KVPOL))
    elif kind == 'v':
        e("s_add_u32 s%d, s%d, %d" % (sT, sVb, (32 * idx + 8 * n) * 512))
        e("buffer_load_dwordx4 v%d, s[%d:%d], s%d offen%s lds" % (vDV, sV, sV + 3, sT, KVPOL))
    elif kind == 'wo':
        e("s_add_u32 s%d, s%d, %d" % (sT, sWOb, (32 * idx) * 896))
        e("buffer_load_dwordx4 v%d, s[%d:%d], s%d offen lds" % (vDWO[n], sWO, sWO + 3, sT))
    else:
        raise ValueError(kind)

def srd(s, lo, nbytes):
    e("s_mov_b32 s%d, s%d" % (s, lo))
    e("s_and_b32 s%d, s%d, 0xffff" % (s + 1, lo + 1))
    e("s_mov_b32 s%d, %d" % (s + 2, nbytes))
    e("s_mov_b32 s%d, 0x00020000" % (s + 3))

import os
STAMPS = bool(os.environ.get("GEN_STAMPS"))
nstamp = [0]
def stamp():
    if not STAMPS: return
    i = nstamp[0]; nstamp[0] += 1
    e("s_memtime s[%d:%d]" % (64 + 2 * i, 65 + 2 * i))
    e("s_waitcnt lgkmcnt(0)")
def stamp_flush():
    if not STAMPS: return
    e("s_mov_b32 s%d, 0x10000000" % (sWS + 2))
    e("s_lshl_b32 s%d, s2, 2" % sT)
    e("s_add_u32 s%d, s%d, s%d" % (sT, sT, sW))
    e("s_lshl_b32 s%d, s%d, 8" % (sT, sT))
    e("s_add_u32 s%d, s%d, %d" % (sT, sT, 128 << 20))
    e("v_mov_b32 v%d, 0" % vA1)
    for i in range(nstamp[0]):
        e("v_mov_b32 v%d, s%d" % (vS, 64 + 2 * i))
        e("v_mov_b32 v%d, s%d" % (vS + 1, 65 + 2 * i))
        e("buffer_store_dwordx2 %s, v%d, s[%d:%d], s%d offen offset:%d" % (vr(vS, 2), vA1, sWS, sWS + 3, sT, 8 * i))
        e("s_nop 2")

def barrier():
    e("s_waitcnt lgkmcnt(0)")
    e("s_barrier")

def gen_main():
    lab(NAME + "_kernel")
    e("s_cmp_ge_u32 s2, 256")
    e("s_cbranch_scc1 L_main_end")
    stamp()
    if STAMPS:
        e("s_memrealtime s[92:93]")
        e("s_waitcnt lgkmcnt(0)")
    e("s_load_dwordx8 s[4:11], s[0:1], 0")
    e("s_load_dwordx8 s[12:19], s[0:1], 32")
    e("v_lshrrev_b32 v%d, 6, v0" % vT0)
    e("v_and_b32 v%d, 63, v0" % vLane)
    e("s_lshr_b32 s%d, s2, 5" % sB)
    e("v_readfirstlane_b32 s%d, v%d" % (sW, vT0))
    e("s_and_b32 s%d, s2, 7" % sH)
    e("s_lshl_b32 s%d, s%d, 1" % (sH, sH))
    e("s_lshr_b32 s%d, s2, 3" % sHalf)
    e("s_and_b32 s%d, s%d, 1" % (sT, sHalf))
    e("s_add_u32 s%d, s%d, s%d" % (sH, sH, sT))
    e("s_lshr_b32 s%d, s2, 4" % sHalf)
    e("s_and_b32 s%d, s%d, 1" % (sHalf, sHalf))
    e("s_mov_b32 s%d, 0x%08x" % (sC, f32bits(1.4426950408889634 / 16.0)))
    e("s_mov_b32 s94, s%d" % sC)
    e("s_mov_b32 s95, s%d" % sC)
    e("s_mov_b32 s%d, 0xffff0000" % sMask)
    e("v_and_b32 v%d, 31, v%d" % (vQ32, vLane))
    e("v_lshrrev_b32 v%d, 5, v%d" % (vHf, vLane))
    e("s_mul_i32 s%d, s%d, %d" % (sRing, sW, RING))
    e("s_waitcnt lgkmcnt(0)")
    srd(sX, 4, 8 * 128 * 448 * 2)
    srd(sK, 6, 8 * 16 * 512 * 256 * 2)
    srd(sV, 8, 8 * 16 * 512 * 256 * 2)
    srd(sWQ, 10, 448 * 4096 * 2)
    srd(sWO, 12, 4096 * 448 * 2)
    srd(sWS, 18, 256 * 4 * 15 * 1024)
    if os.environ.get("NOSHARE"):
        e("s_cmp_eq_u32 s%d, 1" % sHalf)
        for i in range(2):
            e("s_cselect_b32 s60, s%d, s%d" % (sV + i, sK + i))
            e("s_cselect_b32 s61, s%d, s%d" % (sK + i, sV + i))
            e("s_mov_b32 s%d, s60" % (sK + i))
            e("s_mov_b32 s%d, s61" % (sV + i))
    e("s_lshl_b32 s%d, s%d, 1" % (sT, sB))
    e("s_add_u32 s%d, s%d, s%d" % (sT, sT, sHalf))
    e("s_mul_i32 s%d, s%d, %d" % (sXb, sT, 64 * 896))
    e("s_lshl_b32 s%d, s%d, 9" % (sWQb, sH))
    e("s_lshl_b32 s%d, s%d, 7" % (sT, sW))
    e("s_add_u32 s%d, s%d, s%d" % (sWQb, sWQb, sT))
    e("s_lshl_b32 s%d, s%d, 4" % (sT, sB))
    e("s_add_u32 s%d, s%d, s%d" % (sT, sT, sH))
    e("s_lshl_b32 s%d, s%d, 18" % (sT, sT))
    e("s_lshl_b32 s%d, s%d, 16" % (sT2, sW))
    e("s_add_u32 s%d, s%d, s%d" % (sKb, sT, sT2))
    e("s_lshl_b32 s%d, s%d, 7" % (sT2, sW))
    e("s_add_u32 s%d, s%d, s%d" % (sVb, sT, sT2))
    for db in range(4):
        e("s_add_u32 s%d, s%d, %d" % (sT2, sW, db))
        e("s_and_b32 s%d, s%d, 3" % (sT2, sT2))
        e("s_lshl_b32 s%d, s%d, 7" % (sT2, sT2))
        e("s_add_u32 s%d, s%d, s%d" % (sKc[db], sKb, sT2))
    e("s_mul_i32 s%d, s%d, %d" % (sWOb, sH, 256 * 896))
    e("s_mul_i32 s%d, s%d, 224" % (sT, sW))
    e("s_add_u32 s%d, s%d, s%d" % (sWOb, sWOb, sT))
    e("s_lshl_b32 s%d, s2, 2" % sT)
    e("s_add_u32 s%d, s%d, s%d" % (sT, sT, sW))
    e("s_mul_i32 s%d, s%d, %d" % (sPb, sT, 15 * 1024))

    cm("DMA voffsets")
    r8, p8 = vT0, vT1
    e("v_lshrrev_b32 v%d, 3, v%d" % (r8, vLane))
    e("v_and_b32 v%d, 7, v%d" % (p8, vLane))
    e("v_lshrrev_b32 v%d, 1, v%d" % (vT2, r8))
    e("v_xor_b32 v%d, v%d, v%d" % (vT3, p8, vT2))
    e("v_lshlrev_b32 v%d, 4, v%d" % (vA0, vT3))
    e("v_xor_b32 v%d, 64, v%d" % (vA1, vA0))
    e("v_mul_u32_u24 v%d, 896, v%d" % (vA2, r8))
    e("v_add_u32 v%d, v%d, v%d" % (vDX[0], vA2, vA0))
    e("v_add_u32 v%d, v%d, v%d" % (vDX[1], vA2, vA1))
    e("v_lshlrev_b32 v%d, 9, v%d" % (vA2, r8))
    e("v_add_u32 v%d, v%d, v%d" % (vDK[0], vA2, vA0))
    e("v_add_u32 v%d, v%d, v%d" % (vDK[1], vA2, vA1))
    e("v_and_b32 v%d, 1, v%d" % (vT3, vT2))
    e("v_lshlrev_b32 v%d, 2, v%d" % (vT3, vT3))
    e("v_xor_b32 v%d, v%d, v%d" % (vT3, p8, vT3))
    e("v_lshlrev_b32 v%d, 4, v%d" % (vT3, vT3))
    e("v_add_u32 v%d, v%d, v%d" % (vDV, vA2, vT3))
    e("v_lshlrev_b32 v%d, 13, v%d" % (vA2, r8))
    e("v_add_u32 v%d, v%d, v%d" % (vDWQ, vA2, vT3))
    for n in range(7):
        e("v_add_u32 v%d, %d, v%d" % (vT0, 64 * n, vLane))
        e("v_mul_u32_u24 v%d, 4682, v%d" % (vT1, vT0))
        e("v_lshrrev_b32 v%d, 16, v%d" % (vT1, vT1))
        e("v_mul_u32_u24 v%d, 14, v%d" % (vT2, vT1))
        e("v_sub_u32 v%d, v%d, v%d" % (vT2, vT0, vT2))
        e("v_mul_u32_u24 v%d, 896, v%d" % (vT1, vT1))
        e("v_lshlrev_b32 v%d, 4, v%d" % (vT2, vT2))
        e("v_add_u32 v%d, v%d, v%d" % (vDWO[n], vT1, vT2))
    e("s_nop 4")

    st = Stream()
    for j in range(14): st.add('wq', j, 4096)
    for kt in range(4):
        for db in range(4): st.add('k', (kt, db), 4096)
    for j in range(16): st.add('v', j, 4096)
    for t in range(8): st.add('wo', t, 7168)
    C_WQ, C_K, C_V, C_WO = 0, 14, 30, 46

    cm("L2 warm-up prefetch (wq)")
    e("s_lshl_b32 s60, s%d, 1" % sB)
    e("s_add_u32 s60, s60, s%d" % sHalf)
    e("s_mul_i32 s62, s60, 28")
    e("s_mul_i32 s63, s%d, 7" % sW)
    e("s_add_u32 s62, s62, s63")
    e("s_lshl_b32 s62, s62, 13")
    e("s_lshl_b32 s63, s%d, 9" % sH)
    e("s_add_u32 s62, s62, s63")
    e("v_lshlrev_b32 v%d, 13, v%d" % (vT0, vHf))
    e("v_lshl_add_u32 v%d, v%d, 4, v%d" % (vT0, vQ32, vT0))
    for k in range(4):
        e("s_add_u32 s100, s62, %d" % (min(k * 2, 5) * 8192))
        e("buffer_load_dwordx4 v[%d:%d], v%d, s[%d:%d], s100 offen" % (ACC + 64 + 4 * k, ACC + 64 + 4 * k + 3, vT0, sWQ, sWQ + 3))
    st.vm_issued += 4
    e("s_lshl_b32 s63, s%d, 8" % sH)
    e("s_lshl_b32 s100, s60, 4")
    e("s_add_u32 s63, s63, s100")
    e("s_mul_i32 s63, s63, 896")
    e("s_mul_i32 s100, s%d, 3584" % sW)
    e("s_add_u32 s101, s63, s100")
    cm("x tile DMA")
    e("s_mul_i32 s%d, s%d, 14" % (sT2, sW))
    for k in range(14):
        e("s_add_u32 s60, s%d, %d" % (sT2, k))
        e("s_lshr_b32 s61, s60, 3")
        e("s_and_b32 s62, s60, 7")
        e("s_lshl_b32 s63, s60, 10")
        e("s_add_u32 m0, s63, %d" % SH)
        e("s_mul_i32 s63, s62, %d" % (8 * 896))
        e("s_lshl_b32 s61, s61, 7")
        e("s_add_u32 s63, s63, s61")
        e("s_add_u32 s63, s63, s%d" % sXb)
        e("buffer_load_dwordx4 v%d, s[%d:%d], s63 offen lds" % (vDX[k & 1], sX, sX + 3))
        st.vm_issued += 1
    x_last = st.vm_issued
    st.release(-1)
    st.emit_all()

    cm("LDS read address regs")
    e("v_lshrrev_b32 v%d, 1, v%d" % (vT0, vQ32))
    e("v_and_b32 v%d, 7, v%d" % (vT0, vT0))
    e("v_lshlrev_b32 v%d, 7, v%d" % (vT1, vQ32))
    for k in range(4):
        e("v_add_u32 v%d, %d, v%d" % (vT2, 2 * k, vHf))
        e("v_xor_b32 v%d, v%d, v%d" % (vT2, vT2, vT0))
        e("v_lshl_add_u32 v%d, v%d, 4, v%d" % (vT2, vT2, vT1))
        e("v_add_u32 v%d, %d, v%d" % (vXK[k], SH, vT2))
        e("v_add_u32 v%d, s%d, v%d" % (vKA[k], sRing, vT2))
    e("v_lshrrev_b32 v%d, 4, v%d" % (vT0, vLane))
    e("v_and_b32 v%d, 1, v%d" % (vT0, vT0))
    e("v_and_b32 v%d, 15, v%d" % (vT1, vLane))
    e("v_lshrrev_b32 v%d, 2, v%d" % (vT2, vT1))
    e("v_and_b32 v%d, 3, v%d" % (vT3, vT1))
    e("v_lshl_add_u32 v%d, v%d, 3, v%d" % (vA0, vHf, vT2))
    e("v_lshlrev_b32 v%d, 7, v%d" % (vA0, vA0))
    e("v_lshrrev_b32 v%d, 1, v%d" % (vA1, vT3))
    e("v_lshl_add_u32 v%d, v%d, 1, v%d" % (vA1, vT0, vA1))
    e("v_lshrrev_b32 v%d, 1, v%d" % (vA2, vT2))
    e("v_lshlrev_b32 v%d, 2, v%d" % (vA2, vA2))
    e("v_xor_b32 v%d, v%d, v%d" % (vA1, vA1, vA2))
    e("v_lshl_add_u32 v%d, v%d, 4, v%d" % (vA0, vA1, vA0))
    e("v_and_b32 v%d, 1, v%d" % (vA1, vT3))
    e("v_lshl_add_u32 v%d, v%d, 3, v%d" % (vA0, vA1, vA0))
    e("v_add_u32 v%d, s%d, v%d" % (vTR[0], sRing, vA0))
    e("v_xor_b32 v%d, 64, v%d" % (vTR[1], vTR[0]))
    e("v_lshrrev_b32 v%d, 4, v%d" % (vA0, vLane))
    e("v_lshl_add_u32 v%d, v%d, 2, v%d" % (vA0, vA0, vT2))
    e("v_mul_u32_u24 v%d, 224, v%d" % (vA0, vA0))
    e("v_lshl_add_u32 v%d, v%d, 3, v%d" % (vA0, vT3, vA0))
    e("v_add_u32 v%d, s%d, v%d" % (vWOr, sRing, vA0))

    e("s_waitcnt vmcnt(%d)" % (st.vm_issued - x_last))
    e("s_barrier")

    stamp()
    cm("==== phase 1: Q^T = wq^T x^T ====")
    def p1_reads(j, buf):
        base = FB + buf * 32
        off = st.chunks[C_WQ + j]['off']
        for ks in range(2):
            for D in range(2):
                for a in range(2):
                    r = base + (ks * 2 + D) * 4 + a * 2
                    e("ds_read_b64_tr_b16 %s, v%d offset:%d" % (vr(r, 2), vTR[D], off + (16 * ks + 4 * a) * 128))
            s = 2 * j + ks
            for t in range(2):
                r = base + 16 + (ks * 2 + t) * 4
                e("ds_read_b128 %s, v%d offset:%d" % (vr(r, 4), vXK[s & 3], (s >> 2) * 8192 + t * 4096))
    def p1_mfma(j, buf, half):
        base = FB + buf * 32
        ks = half
        for D in range(2):
            for t in range(2):
                acc = ACC + (D * 2 + t) * 16
                c = "0" if (j == 0 and ks == 0) else vr(acc, 16)
                e("v_mfma_f32_32x32x16_bf16 %s, %s, %s, %s" % (vr(acc, 16), vr(base + (ks * 2 + D) * 4, 4), vr(base + 16 + (ks * 2 + t) * 4, 4), c))
                if (D * 2 + t) % 2 == 1:
                    st.emit_one()
    st.wait(C_WQ + 0)
    p1_reads(0, 0)
    for j in range(14):
        e("s_waitcnt lgkmcnt(0)")
        st.release(C_WQ + j)
        p1_mfma(j, j & 1, 0)
        if j + 1 < 14:
            st.wait(C_WQ + j + 1)
            p1_reads(j + 1, (j + 1) & 1)
        p1_mfma(j, j & 1, 1)
    st.emit_all()
    stamp()
    e("v_lshlrev_b32 v%d, 4, v%d" % (vT1, vLane))
    for k in range(4):
        e("s_add_u32 s100, s101, %d" % (min(k * 1024, 2560)))
        e("buffer_load_dwordx4 v[%d:%d], v%d, s[%d:%d], s100 offen" % (ACC + 64 + 4 * k, ACC + 64 + 4 * k + 3, vT1, sWO, sWO + 3))
    st.vm_issued += 4
    e("s_barrier")
    e("s_nop 15")
    e("s_lshr_b32 s%d, s%d, 1" % (sT, sW))
    e("s_lshl_b32 s%d, s%d, 8" % (sT, sT))
    e("s_add_u32 s%d, s%d, %d" % (sT, sT, SH))
    e("s_and_b32 s%d, s%d, 1" % (sT2, sW))
    e("s_lshl_b32 s%d, s%d, 3" % (sT2, sT2))
    e("v_and_b32 v%d, 15, v%d" % (vT0, vQ32))
    e("v_xor_b32 v%d, s%d, v%d" % (vT0, sT2, vT0))
    e("v_lshlrev_b32 v%d, 4, v%d" % (vT0, vT0))
    e("v_lshl_add_u32 v%d, v%d, 9, v%d" % (vT0, vQ32, vT0))
    e("v_lshl_add_u32 v%d, v%d, 3, v%d" % (vT0, vHf, vT0))
    e("v_add_u32 v%d, s%d, v%d" % (vA0, sT, vT0))
    for D in range(2):
        for t in range(2):
            acc = ACC + (D * 2 + t) * 16
            for g in range(4):
                e("v_cvt_pk_bf16_f32 v%d, v%d, v%d" % (vS + 0, acc + 4 * g, acc + 4 * g + 1))
                e("v_cvt_pk_bf16_f32 v%d, v%d, v%d" % (vS + 1, acc + 4 * g + 2, acc + 4 * g + 3))
                e("v_xor_b32 v%d, %d, v%d" % (vA1, (4 * D + g) << 4, vA0))
                e("ds_write_b64 v%d, %s offset:%d" % (vA1, vr(vS, 2), t * 16384))
    barrier()
    e("v_and_b32 v%d, 15, v%d" % (vT0, vQ32))
    e("v_xor_b32 v%d, v%d, v%d" % (vT0, vHf, vT0))
    e("v_lshlrev_b32 v%d, 4, v%d" % (vT0, vT0))
    e("v_lshl_add_u32 v%d, v%d, 9, v%d" % (vT0, vQ32, vT0))
    e("v_add_u32 v%d, %d, v%d" % (vA0, SH, vT0))
    for db in range(4):
        e("s_add_u32 s%d, s%d, %d" % (sT2, sW, db))
        e("s_and_b32 s%d, s%d, 3" % (sT2, sT2))
        e("s_lshl_b32 s%d, s%d, 7" % (sT2, sT2))
        e("v_xor_b32 v%d, s%d, v%d" % (vA1, sT2, vA0))
        for k in range(4):
            sidx = 4 * db + k
            e("v_xor_b32 v%d, %d, v%d" % (vA2, k << 5, vA1))
            for t in range(2):
                e("ds_read_b128 %s, v%d offset:%d" % (ar((sidx * 2 + t) * 4, 4), vA2, t * 16384))
        e("s_waitcnt lgkmcnt(0)")

    stamp()
    cm("==== phase 2 ====")
    def p2_reads(c, buf):
        base = FB + buf * 32
        off = st.chunks[C_K + c]['off']
        for k in range(4):
            e("ds_read_b128 %s, v%d offset:%d" % (vr(base + 4 * k, 4), vKA[k], off))
    VQ = []
    mreg = [vS + 0, vS + 2]
    lreg = [vS + 1, vS + 3]
    tmpm = [vS + 4, vS + 5]
    def accreg(kt, t, i): return ACC + (kt * 2 + t) * 16 + i
    def round_max(kt):
        out = []
        for t in range(2):
            for i in range(0, 16, 2):
                a0, a1 = accreg(kt, t, i), accreg(kt, t, i + 1)
                out.append("v_cvt_pk_bf16_f32 v%d, v%d, v%d" % (a1, a0, a1))
                out.append("v_lshlrev_b32 v%d, 16, v%d" % (a0, a1))
                out.append("v_and_b32 v%d, s%d, v%d" % (a1, sMask, a1))
        for i in range(0, 16, 4):
            for t in range(2):
                v = [accreg(kt, t, i + k) for k in range(4)]
                if kt == 0 and i == 0:
                    out.append("v_max_f32 v%d, v%d, v%d" % (mreg[t], v[0], v[1]))
                    out.append("v_max_f32 v%d, v%d, v%d" % (tmpm[t], v[2], v[3]))
                else:
                    out.append("v_max3_f32 v%d, v%d, v%d, v%d" % (mreg[t], mreg[t], v[0], v[1]))
                    out.append("v_max3_f32 v%d, v%d, v%d, v%d" % (tmpm[t], tmpm[t], v[2], v[3]))
        return out
    def p2_mfma(c, buf, half):
        base = FB + buf * 32
        kt, db = divmod(c, 4)
        if db == 1 and half == 0 and kt > 0:
            VQ.extend(round_max(kt - 1))
        for k in range(2 * half, 2 * half + 2):
            s = 4 * db + k
            for t in range(2):
                acc = ACC + (kt * 2 + t) * 16
                cc = "0" if s == 0 else vr(acc, 16)
                e("v_mfma_f32_32x32x16_bf16 %s, %s, %s, %s" % (vr(acc, 16), vr(base + 4 * k, 4), ar((s * 2 + t) * 4, 4), cc))
                for _ in range(3):
                    if VQ: e(VQ.pop(0))
            st.emit_one()
    st.wait(C_K + 0)
    p2_reads(0, 0)
    for c in range(16):
        e("s_waitcnt lgkmcnt(0)")
        st.release(C_K + c)
        p2_mfma(c, c & 1, 0)
        if c + 1 < 16:
            st.wait(C_K + c + 1)
            p2_reads(c + 1, (c + 1) & 1)
        p2_mfma(c, c & 1, 1)
    st.emit_all()
    e("s_nop 15")

    stamp()
    cm("==== phase 3: softmax ====")
    while VQ: e(VQ.pop(0))
    for x_ in round_max(3): e(x_)
    for t in range(2):
        e("v_max_f32 v%d, v%d, v%d" % (mreg[t], mreg[t], tmpm[t]))
    nmc = [vS + 6, vS + 8]
    for t in range(2):
        e("v_mul_f32 v%d, s%d, v%d" % (nmc[t], sC, mreg[t]))
    for kt in range(4):
        for i in range(0, 16, 2):
            for t in range(2):
                a = accreg(kt, t, i)
                e("v_pk_fma_f32 %s, %s, s[94:95], %s op_sel_hi:[1,0,0] neg_lo:[0,0,1] neg_hi:[0,0,1]" % (vr(a, 2), vr(a, 2), vr(nmc[t], 2)))
            for t in range(2):
                a = accreg(kt, t, i)
                e("v_exp_f32 v%d, v%d" % (a, a))
                e("v_exp_f32 v%d, v%d" % (a + 1, a + 1))
    e("s_nop 0")
    sp = [vS + 10, vS + 12]
    sp2 = [vS + 14, vS + 16]
    for t in range(2):
        vals = [accreg(kt, t, i) for kt in range(4) for i in range(0, 16, 2)]
        e("v_pk_add_f32 %s, %s, %s" % (vr(sp[t], 2), vr(vals[0], 2), vr(vals[1], 2)))
        e("v_pk_add_f32 %s, %s, %s" % (vr(sp2[t], 2), vr(vals[2], 2), vr(vals[3], 2)))
    for idx in range(4, 32, 2):
        for t in range(2):
            vals = [accreg(kt, t, i) for kt in range(4) for i in range(0, 16, 2)]
            e("v_pk_add_f32 %s, %s, %s" % (vr(sp[t], 2), vr(sp[t], 2), vr(vals[idx], 2)))
            e("v_pk_add_f32 %s, %s, %s" % (vr(sp2[t], 2), vr(sp2[t], 2), vr(vals[idx + 1], 2)))
    for t in range(2):
        e("v_pk_add_f32 %s, %s, %s" % (vr(sp[t], 2), vr(sp[t], 2), vr(sp2[t], 2)))
    for t in range(2):
        e("v_add_f32 v%d, v%d, v%d" % (lreg[t], sp[t], sp[t] + 1))
    e("s_lshl_b32 s%d, s%d, 10" % (sT, sW))
    e("s_add_u32 s%d, s%d, %d" % (sT, sT, SH))
    e("v_lshlrev_b32 v%d, 3, v%d" % (vT0, vQ32))
    e("v_lshl_add_u32 v%d, v%d, 9, v%d" % (vT1, vHf, vT0))
    e("v_add_u32 v%d, s%d, v%d" % (vA0, sT, vT1))
    e("v_add_u32 v%d, %d, v%d" % (vA1, SH, vT0))
    for t in range(2):
        e("ds_write_b64 v%d, %s offset:%d" % (vA0, vr(mreg[t], 2), t * 256))
    barrier()
    ML = FB
    for t in range(2):
        for k in range(8):
            e("ds_read_b64 %s, v%d offset:%d" % (vr(ML + (t * 8 + k) * 2, 2), vA1, k * 512 + t * 256))
        e("s_waitcnt lgkmcnt(0)")
    barrier()
    fac = [vS + 12, vS + 14]
    for t in range(2):
        mm = vS + 22 + t
        ms = [ML + (t * 8 + k) * 2 for k in range(8)]
        e("v_max3_f32 v%d, v%d, v%d, v%d" % (mm, ms[0], ms[1], ms[2]))
        e("v_max3_f32 v%d, v%d, v%d, v%d" % (mm, mm, ms[3], ms[4]))
        e("v_max3_f32 v%d, v%d, v%d, v%d" % (mm, mm, ms[5], ms[6]))
        e("v_max_f32 v%d, v%d, v%d" % (mm, mm, ms[7]))
        for k in range(8):
            e("v_sub_f32 v%d, v%d, v%d" % (ms[k], ms[k], mm))
            e("v_mul_f32 v%d, s%d, v%d" % (ms[k], sC, ms[k]))
            e("v_exp_f32 v%d, v%d" % (ms[k], ms[k]))
        e("s_nop 0")
        lg = vS + 16 + t
        e("v_mul_f32 v%d, v%d, v%d" % (lg, ms[0], ms[0] + 1))
        for k in range(1, 8):
            e("v_fmac_f32 v%d, v%d, v%d" % (lg, ms[k], ms[k] + 1))
        e("v_rcp_f32 v%d, v%d" % (lg, lg))
        e("v_sub_f32 v%d, v%d, v%d" % (fac[t], mreg[t], mm))
        e("v_mul_f32 v%d, s%d, v%d" % (fac[t], sC, fac[t]))
        e("v_exp_f32 v%d, v%d" % (fac[t], fac[t]))
        e("s_nop 0")
        e("v_mul_f32 v%d, v%d, v%d" % (fac[t], fac[t], lg))
    e("s_lshl_b32 s%d, s%d, 8" % (sT, sW))
    e("s_add_u32 s%d, s%d, %d" % (sT, sT, SH))
    e("v_and_b32 v%d, 15, v%d" % (vT0, vQ32))
    e("v_lshlrev_b32 v%d, 4, v%d" % (vT0, vT0))
    e("v_lshl_add_u32 v%d, v%d, 10, v%d" % (vT0, vQ32, vT0))
    e("v_lshl_add_u32 v%d, v%d, 3, v%d" % (vT1, vHf, vT0))
    e("v_add_u32 v%d, s%d, v%d" % (vA0, sT, vT1))
    for kt in range(4):
        for g in range(4):
            e("v_xor_b32 v%d, %d, v%d" % (vA1, (4 * kt + g) << 4, vA0))
            for t in range(2):
                a = accreg(kt, t, 4 * g)
                for i in range(0, 4, 2):
                    e("v_pk_mul_f32 %s, %s, %s op_sel_hi:[1,0]" % (vr(a + i, 2), vr(a + i, 2), vr(fac[t], 2)))
                pk = vS + 18 + 2 * t
                e("v_cvt_pk_bf16_f32 v%d, v%d, v%d" % (pk, a, a + 1))
                e("v_cvt_pk_bf16_f32 v%d, v%d, v%d" % (pk + 1, a + 2, a + 3))
                e("ds_write_b64 v%d, %s offset:%d" % (vA1, vr(pk, 2), t * 32768))
    vPR = [vS + 0, vS + 1, vS + 2, vS + 3, vS + 4, vS + 5, vS + 6, vS + 7]
    e("v_and_b32 v%d, 15, v%d" % (vT0, vQ32))
    e("v_xor_b32 v%d, v%d, v%d" % (vT0, vHf, vT0))
    e("v_lshlrev_b32 v%d, 4, v%d" % (vT0, vT0))
    e("v_lshl_add_u32 v%d, v%d, 10, v%d" % (vT0, vQ32, vT0))
    e("v_add_u32 v%d, %d, v%d" % (vA2, SH, vT0))
    e("s_waitcnt lgkmcnt(0)")
    for k in range(8):
        e("v_xor_b32 v%d, %d, v%d" % (vPR[k], (2 * k) << 4, vA2))
    e("s_barrier")

    stamp()
    cm("==== phase 4 ====")
    def p4_reads(j, buf):
        base = FB + buf * 32
        off = st.chunks[C_V + j]['off']
        for ks in range(2):
            for D in range(2):
                for a in range(2):
                    r = base + (ks * 2 + D) * 4 + a * 2
                    e("ds_read_b64_tr_b16 %s, v%d offset:%d" % (vr(r, 2), vTR[D], off + (16 * ks + 4 * a) * 128))
            s = 2 * j + ks
            for t in range(2):
                r = base + 16 + (ks * 2 + t) * 4
                e("ds_read_b128 %s, v%d offset:%d" % (vr(r, 4), vPR[s & 7], (s >> 3) * 256 + t * 32768))
    def p4_mfma(j, buf, half):
        base = FB + buf * 32
        ks = half
        for D in range(2):
            for t in range(2):
                acc = ACC + (D * 2 + t) * 16
                c = "0" if (j == 0 and ks == 0) else vr(acc, 16)
                e("v_mfma_f32_32x32x16_bf16 %s, %s, %s, %s" % (vr(acc, 16), vr(base + (ks * 2 + D) * 4, 4), vr(base + 16 + (ks * 2 + t) * 4, 4), c))
                if (D * 2 + t) % 2 == 1:
                    st.emit_one()
    st.wait(C_V + 0)
    p4_reads(0, 0)
    for j in range(16):
        e("s_waitcnt lgkmcnt(0)")
        st.release(C_V + j)
        p4_mfma(j, j & 1, 0)
        if j + 1 < 16:
            st.wait(C_V + j + 1)
            p4_reads(j + 1, (j + 1) & 1)
        p4_mfma(j, j & 1, 1)
    st.emit_all()
    stamp()
    e("s_barrier")
    e("s_nop 15")
    e("s_lshr_b32 s%d, s%d, 1" % (sT, sW))
    e("s_lshl_b32 s%d, s%d, 8" % (sT, sT))
    e("s_add_u32 s%d, s%d, %d" % (sT, sT, SH))
    e("s_and_b32 s%d, s%d, 1" % (sT2, sW))
    e("s_lshl_b32 s%d, s%d, 3" % (sT2, sT2))
    e("v_and_b32 v%d, 15, v%d" % (vT0, vQ32))
    e("v_xor_b32 v%d, v%d, v%d" % (vT0, vHf, vT0))
    e("v_xor_b32 v%d, s%d, v%d" % (vT0, sT2, vT0))
    e("v_lshlrev_b32 v%d, 4, v%d" % (vT0, vT0))
    e("v_lshl_add_u32 v%d, v%d, 9, v%d" % (vT0, vQ32, vT0))
    e("v_add_u32 v%d, s%d, v%d" % (vA0, sT, vT0))
    for D in range(2):
        for t in range(2):
            acc = ACC + (D * 2 + t) * 16
            for g in range(4):
                e("v_cvt_pk_bf16_f32 v%d, v%d, v%d" % (vS + 8, acc + 4 * g, acc + 4 * g + 1))
                e("v_cvt_pk_bf16_f32 v%d, v%d, v%d" % (vS + 9, acc + 4 * g + 2, acc + 4 * g + 3))
                e("v_xor_b32 v%d, %d, v%d" % (vA1, (4 * D + 2 * (g & 1)) << 4, vA0))
                e("ds_write_b64 v%d, %s offset:%d" % (vA1, vr(vS + 8, 2), t * 16384 + (g >> 1) * 8))
    barrier()
    e("v_and_b32 v%d, 15, v%d" % (vT0, vLane))
    e("v_lshrrev_b32 v%d, 4, v%d" % (vT1, vLane))
    e("v_xor_b32 v%d, v%d, v%d" % (vT1, vT1, vT0))
    e("v_lshlrev_b32 v%d, 4, v%d" % (vT1, vT1))
    e("v_lshl_add_u32 v%d, v%d, 9, v%d" % (vT1, vT0, vT1))
    e("v_add_u32 v%d, %d, v%d" % (vA0, SH, vT1))
    for T3 in range(4):
        e("v_xor_b32 v%d, %d, v%d" % (vA1, (4 * T3) << 4, vA0))
        for Th in range(2):
            T = Th * 4 + T3
            for qt in range(4):
                e("ds_read_b128 %s, v%d offset:%d" % (ar((T * 4 + qt) * 4, 4), vA1, qt * 8192 + Th * 256))
        e("s_waitcnt lgkmcnt(0)")

    stamp()
    cm("==== phase 5 ====")
    def p5_reads(T, buf):
        base = FB + buf * 32
        off = st.chunks[C_WO + T]['off']
        for ct in range(7):
            for a in range(2):
                e("ds_read_b64_tr_b16 %s, v%d offset:%d" % (vr(base + ct * 4 + a * 2, 2), vWOr, off + a * 16 * 224 + ct * 32))
    def p5_mfma(T, buf, cts):
        base = FB + buf * 32
        for ct in cts:
            for qt in range(4):
                acc = ACC + (ct * 4 + qt) * 4
                c = "0" if T == 0 else vr(acc, 4)
                e("v_mfma_f32_16x16x32_bf16 %s, %s, %s, %s" % (vr(acc, 4), vr(base + ct * 4, 4), ar((T * 4 + qt) * 4, 4), c))
            st.emit_one()
    st.wait(C_WO + 0)
    p5_reads(0, 0)
    for T in range(8):
        e("s_waitcnt lgkmcnt(0)")
        st.release(C_WO + T)
        p5_mfma(T, T & 1, [0, 1, 2, 3])
        if T + 1 < 8:
            st.wait(C_WO + T + 1)
            p5_reads(T + 1, (T + 1) & 1)
        p5_mfma(T, T & 1, [4, 5, 6])
    st.emit_all()
    e("s_nop 15")
    stamp()
    e("v_lshlrev_b32 v%d, 4, v%d" % (vA0, vLane))
    mx = [vS + 0, vS + 1]
    e("v_max_f32 v%d, |v%d|, |v%d|" % (mx[0], ACC, ACC + 1))
    e("v_max_f32 v%d, |v%d|, |v%d|" % (mx[1], ACC + 2, ACC + 3))
    for i in range(4, 112, 4):
        e("v_max3_f32 v%d, |v%d|, |v%d|, v%d" % (mx[0], ACC + i, ACC + i + 1, mx[0]))
        e("v_max3_f32 v%d, |v%d|, |v%d|, v%d" % (mx[1], ACC + i + 2, ACC + i + 3, mx[1]))
    e("v_max_f32 v%d, v%d, v%d" % (mx[0], mx[0], mx[1]))
    e("v_bfe_u32 v%d, v%d, 23, 8" % (mx[0], mx[0]))
    e("v_max_u32 v%d, 15, v%d" % (mx[0], mx[0]))
    e("v_min_u32 v%d, 0xfe, v%d" % (mx[0], mx[0]))
    e("v_sub_u32 v%d, 0x10c, v%d" % (vS + 2, mx[0]))
    e("v_lshlrev_b32 v%d, 23, v%d" % (vS + 2, vS + 2))
    e("v_subrev_u32 v%d, 14, v%d" % (vS + 3, mx[0]))
    e("v_lshlrev_b32 v%d, 23, v%d" % (vS + 3, vS + 3))
    e("v_lshlrev_b32 v%d, 2, v%d" % (vA1, vLane))
    e("s_add_u32 s%d, s%d, %d" % (sT, sPb, 14 * 1024))
    e("buffer_store_dword v%d, v%d, s[%d:%d], s%d offen%s" % (vS + 3, vA1, sWS, sWS + 3, sT, STPOL))
    for tp in range(14):
        acc = ACC + tp * 8
        for i in range(8):
            e("v_mul_f32 v%d, v%d, v%d" % (acc + i, acc + i, vS + 2))
        for i in range(4):
            e("v_cvt_pk_f16_f32 v%d, v%d, v%d" % (acc + i, acc + 2 * i, acc + 2 * i + 1))
        if tp % 4 == 0:
            e("s_add_u32 s%d, s%d, %d" % (sT, sPb, tp * 1024))
        e("buffer_store_dwordx4 %s, v%d, s[%d:%d], s%d offen offset:%d%s" % (vr(acc, 4), vA0, sWS, sWS + 3, sT, (tp % 4) * 1024, STPOL))
    e("s_waitcnt vmcnt(0)")
    stamp()
    if STAMPS:
        i = nstamp[0]; nstamp[0] += 2
        e("s_mov_b64 s[%d:%d], s[92:93]" % (64 + 2 * i, 65 + 2 * i))
        e("s_memrealtime s[%d:%d]" % (66 + 2 * i, 67 + 2 * i))
        e("s_waitcnt lgkmcnt(0)")
    stamp_flush()
    lab("L_main_end")
    e("s_endpgm")

def gen_reduce():
    L.append(".p2align 8")
    L.append(".globl reduce_kernel")
    L.append(".type reduce_kernel,@function")
    lab("reduce_kernel")
    e("s_cmp_ge_u32 s2, 224")
    e("s_cbranch_scc1 L_red_end")
    e("s_load_dwordx2 s[4:5], s[0:1], 40")
    e("s_load_dwordx2 s[6:7], s[0:1], 56")
    e("v_lshrrev_b32 v1, 6, v0")
    e("v_and_b32 v2, 63, v0")
    e("s_and_b32 s20, s2, 7")
    e("v_readfirstlane_b32 s21, v1")
    e("s_lshr_b32 s22, s2, 3")
    e("s_cmp_ge_u32 s22, 14")
    e("s_cselect_b32 s23, 1, 0")
    e("s_mul_i32 s24, s23, 14")
    e("s_sub_u32 s24, s22, s24")
    e("s_waitcnt lgkmcnt(0)")
    srd(8, 4, 8 * 128 * 448 * 2)
    srd(12, 6, 256 * 4 * 15 * 1024)
    e("s_lshl_b32 s25, s20, 1")
    e("s_add_u32 s25, s25, s23")
    e("s_lshl_b32 s25, s25, 6")
    e("s_add_u32 s25, s25, s21")
    e("s_mul_i32 s25, s25, 15")
    e("s_add_u32 s32, s25, 14")
    e("s_lshl_b32 s32, s32, 10")
    e("s_add_u32 s25, s25, s24")
    e("s_lshl_b32 s25, s25, 10")
    e("v_lshlrev_b32 v6, 2, v2")
    e("v_lshlrev_b32 v3, 4, v2")
    e("s_mov_b32 s31, 0xffff0000")
    e("s_nop 4")
    for h in range(16):
        e("s_add_u32 s26, s25, %d" % (h * 4 * 15 * 1024))
        e("buffer_load_dwordx4 v[%d:%d], v3, s[12:15], s26 offen" % (8 + 4 * h, 11 + 4 * h))
        e("s_add_u32 s26, s32, %d" % (h * 4 * 15 * 1024))
        e("buffer_load_dword v%d, v6, s[12:15], s26 offen" % (80 + h))
    e("s_and_b32 s27, s24, 1")
    e("s_lshl_b32 s27, s27, 1")
    e("s_lshr_b32 s28, s24, 1")
    e("s_lshl_b32 s29, s20, 7")
    e("s_lshl_b32 s30, s23, 6")
    e("s_add_u32 s29, s29, s30")
    e("s_lshl_b32 s30, s27, 4")
    e("s_add_u32 s29, s29, s30")
    e("s_mul_i32 s29, s29, 896")
    e("s_mul_i32 s30, s21, 224")
    e("s_add_u32 s29, s29, s30")
    e("s_lshl_b32 s30, s28, 5")
    e("s_add_u32 s29, s29, s30")
    e("v_and_b32 v4, 15, v2")
    e("v_mul_u32_u24 v4, 896, v4")
    e("v_lshrrev_b32 v5, 4, v2")
    e("v_lshl_add_u32 v4, v5, 3, v4")
    for i in range(8): e("v_mov_b32 v%d, 0" % (72 + i))
    for h in range(16):
        e("s_waitcnt vmcnt(%d)" % (30 - 2 * h))
        for i in range(4):
            e("v_fma_mix_f32 v%d, v%d, v%d, v%d op_sel_hi:[1,0,0]" % (72 + 2 * i, 8 + 4 * h + i, 80 + h, 72 + 2 * i))
            e("v_fma_mix_f32 v%d, v%d, v%d, v%d op_sel:[1,0,0] op_sel_hi:[1,0,0]" % (73 + 2 * i, 8 + 4 * h + i, 80 + h, 73 + 2 * i))
    e("v_cvt_pk_bf16_f32 v8, v72, v73")
    e("v_cvt_pk_bf16_f32 v9, v74, v75")
    e("v_cvt_pk_bf16_f32 v10, v76, v77")
    e("v_cvt_pk_bf16_f32 v11, v78, v79")
    e("buffer_store_dwordx2 v[8:9], v4, s[8:11], s29 offen")
    e("s_add_u32 s29, s29, %d" % (16 * 896))
    e("buffer_store_dwordx2 v[10:11], v4, s[8:11], s29 offen")
    e("s_waitcnt vmcnt(0)")
    lab("L_red_end")
    e("s_endpgm")

HEADER = """; Kernarg layout for this problem (64 bytes, ptrs only, base s[0:1]):
;   offset   0: d_in[0] x  shape=(8, 128, 448) dtype=bfloat16
;   offset   8: d_in[1] k_cache  shape=(8, 16, 512, 256) dtype=bfloat16
;   offset  16: d_in[2] v_cache  shape=(8, 16, 512, 256) dtype=bfloat16
;   offset  24: d_in[3] wq  shape=(448, 4096) dtype=bfloat16
;   offset  32: d_in[4] wo  shape=(4096, 448) dtype=bfloat16
;   offset  40: d_out     shape=(8, 128, 448) dtype=bfloat16
;   offset  48: d_debug   256 bytes
;   offset  56: d_ws      268435456 bytes workspace
; generated by gen.py
; @launch kernel=%s_kernel grid=(256,1,1) block=(256,1,1) lds=%d
; @launch kernel=reduce_kernel grid=(224,1,1) block=(256,1,1) lds=0
.amdgcn_target "amdgcn-amd-amdhsa--gfx950"
.text
.globl %s_kernel
.p2align 8
.type %s_kernel,@function
""" % (NAME, LDS_TOTAL, NAME, NAME)

FOOTER = """.section .rodata,"a"
.p2align 6
.amdhsa_kernel %s_kernel
  .amdhsa_next_free_vgpr 384
  .amdhsa_next_free_sgpr 102
  .amdhsa_accum_offset 256
  .amdhsa_group_segment_fixed_size 0
  .amdhsa_kernarg_size 64
  .amdhsa_user_sgpr_count 2
  .amdhsa_user_sgpr_kernarg_segment_ptr 1
  .amdhsa_system_sgpr_workgroup_id_x 1
.end_amdhsa_kernel
.p2align 6
.amdhsa_kernel reduce_kernel
  .amdhsa_next_free_vgpr 96
  .amdhsa_next_free_sgpr 40
  .amdhsa_accum_offset 96
  .amdhsa_group_segment_fixed_size 0
  .amdhsa_kernarg_size 64
  .amdhsa_user_sgpr_count 2
  .amdhsa_user_sgpr_kernarg_segment_ptr 1
  .amdhsa_system_sgpr_workgroup_id_x 1
.end_amdhsa_kernel
""" % NAME

gen_main()
gen_reduce()
with open(OUT, "w") as f:
    f.write(HEADER + "\n".join(L) + "\n" + FOOTER)
print("wrote", OUT, len(L), "lines")
```

```python
import struct, sys, os
KVPOL = os.environ.get("KVPOL", " nt")
STPOL = os.environ.get("STPOL", " sc1")

OUT = sys.argv[1] if len(sys.argv) > 1 else "standalone__mha_block_cached__near_ridge.s"
NAME = "standalone__mha_block_cached__near_ridge"

L = []
def e(s): L.append("    " + s)
def lab(s): L.append(s + ":")
def cm(s): L.append("    ; " + s)

def f32bits(x): return struct.unpack("<I", struct.pack("<f", x))[0]

RING = 24576
SH = 4 * RING
LDS_TOTAL = 163840

sX, sK, sV, sWQ, sWO, sWS = 20, 24, 28, 32, 36, 40
sW = 44
sRing = 45
sXb, sWQb, sKb, sVb, sWOb, sPb = 46, 47, 48, 49, 50, 51
sT = 52
sC = 53
sB, sH, sHalf = 54, 55, 56
sT2 = 57
sMask = 58
sKc = [96, 97, 98, 99]

vLane = 1
vQ32 = 2
vHf = 3
vT0, vT1, vT2, vT3 = 4, 5, 6, 7
vXK = [8, 9, 10, 11]
vKA = [12, 13, 14, 15]
vTR = [16, 17]
vWOr = 18
vDX = [19, 20]
vDWQ = 21
vDK = [22, 23]
vDV = 24
vDWO = [25, 26, 27, 28, 29, 30, 31]
vA0, vA1, vA2, vA3, vA4, vA5, vA6, vA7 = 32, 33, 34, 35, 36, 37, 38, 39
vS = 40
FB = 64
ACC = 128

def vr(b, n): return "v[%d:%d]" % (b, b + n - 1)
def ar(b, n): return "a[%d:%d]" % (b, b + n - 1)

class Stream:
    def __init__(self):
        self.chunks = []
        self.vm_issued = 0
        self.last_instr = {}
        self.pending = []
        self.next_chunk = 0
        self.pos = 0
    def add(self, kind, idx, size):
        if self.pos + size > RING:
            self.pos = 0
        self.chunks.append(dict(kind=kind, idx=idx, size=size, off=self.pos))
        self.pos += size
    def dep(self, c):
        a = self.chunks[c]
        for p in range(c - 1, -1, -1):
            b = self.chunks[p]
            if a['off'] < b['off'] + b['size'] and b['off'] < a['off'] + a['size']:
                return p
        return -1
    def release(self, consumed):
        while self.next_chunk < len(self.chunks) and self.dep(self.next_chunk) <= consumed:
            c = self.next_chunk
            n = self.chunks[c]['size'] // 1024
            for i in range(n):
                self.pending.append((c, i))
            self.next_chunk += 1
    def emit_one(self):
        if not self.pending:
            return False
        c, n = self.pending.pop(0)
        ch = self.chunks[c]
        emit_dma(ch['kind'], ch['idx'], n, ch['off'] + n * 1024)
        self.vm_issued += 1
        self.last_instr[c] = self.vm_issued
        return True
    def emit_all(self):
        while self.emit_one():
            pass
    def wait(self, c):
        while any(p[0] <= c for p in self.pending):
            self.emit_one()
        n = self.vm_issued - self.last_instr[c]
        e("s_waitcnt vmcnt(%d)" % n)

def emit_dma(kind, idx, n, ringoff):
    e("s_add_u32 m0, s%d, %d" % (sRing, ringoff))
    if kind == 'wq':
        e("s_add_u32 s%d, s%d, %d" % (sT, sWQb, (32 * idx + 8 * n) * 8192))
        e("buffer_load_dwordx4 v%d, s[%d:%d], s%d offen lds" % (vDWQ, sWQ, sWQ + 3, sT))
    elif kind == 'k':
        kt, db = idx
        e("s_add_u32 s%d, s%d, %d" % (sT, sKc[db], (32 * kt + 8 * n) * 512))
        e("buffer_load_dwordx4 v%d, s[%d:%d], s%d offen%s lds" % (vDK[n & 1], sK, sK + 3, sT, KVPOL))
    elif kind == 'v':
        e("s_add_u32 s%d, s%d, %d" % (sT, sVb, (32 * idx + 8 * n) * 512))
        e("buffer_load_dwordx4 v%d, s[%d:%d], s%d offen%s lds" % (vDV, sV, sV + 3, sT, KVPOL))
    elif kind == 'wo':
        e("s_add_u32 s%d, s%d, %d" % (sT, sWOb, (32 * idx) * 896))
        e("buffer_load_dwordx4 v%d, s[%d:%d], s%d offen lds" % (vDWO[n], sWO, sWO + 3, sT))
    else:
        raise ValueError(kind)

def srd(s, lo, nbytes):
    e("s_mov_b32 s%d, s%d" % (s, lo))
    e("s_and_b32 s%d, s%d, 0xffff" % (s + 1, lo + 1))
    e("s_mov_b32 s%d, %d" % (s + 2, nbytes))
    e("s_mov_b32 s%d, 0x00020000" % (s + 3))

import os
STAMPS = bool(os.environ.get("GEN_STAMPS"))
nstamp = [0]
def stamp():
    if not STAMPS: return
    i = nstamp[0]; nstamp[0] += 1
    e("s_memtime s[%d:%d]" % (64 + 2 * i, 65 + 2 * i))
    e("s_waitcnt lgkmcnt(0)")
def stamp_flush():
    if not STAMPS: return
    e("s_mov_b32 s%d, 0x10000000" % (sWS + 2))
    e("s_lshl_b32 s%d, s2, 2" % sT)
    e("s_add_u32 s%d, s%d, s%d" % (sT, sT, sW))
    e("s_lshl_b32 s%d, s%d, 8" % (sT, sT))
    e("s_add_u32 s%d, s%d, %d" % (sT, sT, 128 << 20))
    e("v_mov_b32 v%d, 0" % vA1)
    for i in range(nstamp[0]):
        e("v_mov_b32 v%d, s%d" % (vS, 64 + 2 * i))
        e("v_mov_b32 v%d, s%d" % (vS + 1, 65 + 2 * i))
        e("buffer_store_dwordx2 %s, v%d, s[%d:%d], s%d offen offset:%d" % (vr(vS, 2), vA1, sWS, sWS + 3, sT, 8 * i))
        e("s_nop 2")

def barrier():
    e("s_waitcnt lgkmcnt(0)")
    e("s_barrier")

def gen_main():
    lab(NAME + "_kernel")
    e("s_cmp_ge_u32 s2, 256")
    e("s_cbranch_scc1 L_main_end")
    stamp()
    if STAMPS:
        e("s_memrealtime s[92:93]")
        e("s_waitcnt lgkmcnt(0)")
    e("s_load_dwordx8 s[4:11], s[0:1], 0")
    e("s_load_dwordx8 s[12:19], s[0:1], 32")
    e("v_lshrrev_b32 v%d, 6, v0" % vT0)
    e("v_and_b32 v%d, 63, v0" % vLane)
    e("s_lshr_b32 s%d, s2, 5" % sB)
    e("v_readfirstlane_b32 s%d, v%d" % (sW, vT0))
    e("s_and_b32 s%d, s2, 7" % sH)
    e("s_lshl_b32 s%d, s%d, 1" % (sH, sH))
    e("s_lshr_b32 s%d, s2, 3" % sHalf)
    e("s_and_b32 s%d, s%d, 1" % (sT, sHalf))
    e("s_add_u32 s%d, s%d, s%d" % (sH, sH, sT))
    e("s_lshr_b32 s%d, s2, 4" % sHalf)
    e("s_and_b32 s%d, s%d, 1" % (sHalf, sHalf))
    e("s_mov_b32 s%d, 0x%08x" % (sC, f32bits(1.4426950408889634 / 16.0)))
    e("s_mov_b32 s94, s%d" % sC)
    e("s_mov_b32 s95, s%d" % sC)
    e("s_mov_b32 s%d, 0xffff0000" % sMask)
    e("v_and_b32 v%d, 31, v%d" % (vQ32, vLane))
    e("v_lshrrev_b32 v%d, 5, v%d" % (vHf, vLane))
    e("s_mul_i32 s%d, s%d, %d" % (sRing, sW, RING))
    e("s_waitcnt lgkmcnt(0)")
    srd(sX, 4, 8 * 128 * 448 * 2)
    srd(sK, 6, 8 * 16 * 512 * 256 * 2)
    srd(sV, 8, 8 * 16 * 512 * 256 * 2)
    srd(sWQ, 10, 448 * 4096 * 2)
    srd(sWO, 12, 4096 * 448 * 2)
    srd(sWS, 18, 256 * 4 * 15 * 1024)
    if os.environ.get("NOSHARE"):
        e("s_cmp_eq_u32 s%d, 1" % sHalf)
        for i in range(2):
            e("s_cselect_b32 s60, s%d, s%d" % (sV + i, sK + i))
            e("s_cselect_b32 s61, s%d, s%d" % (sK + i, sV + i))
            e("s_mov_b32 s%d, s60" % (sK + i))
            e("s_mov_b32 s%d, s61" % (sV + i))
    e("s_lshl_b32 s%d, s%d, 1" % (sT, sB))
    e("s_add_u32 s%d, s%d, s%d" % (sT, sT, sHalf))
    e("s_mul_i32 s%d, s%d, %d" % (sXb, sT, 64 * 896))
    e("s_lshl_b32 s%d, s%d, 9" % (sWQb, sH))
    e("s_lshl_b32 s%d, s%d, 7" % (sT, sW))
    e("s_add_u32 s%d, s%d, s%d" % (sWQb, sWQb, sT))
    e("s_lshl_b32 s%d, s%d, 4" % (sT, sB))
    e("s_add_u32 s%d, s%d, s%d" % (sT, sT, sH))
    e("s_lshl_b32 s%d, s%d, 18" % (sT, sT))
    e("s_lshl_b32 s%d, s%d, 16" % (sT2, sW))
    e("s_add_u32 s%d, s%d, s%d" % (sKb, sT, sT2))
    e("s_lshl_b32 s%d, s%d, 7" % (sT2, sW))
    e("s_add_u32 s%d, s%d, s%d" % (sVb, sT, sT2))
    for db in range(4):
        e("s_add_u32 s%d, s%d, %d" % (sT2, sW, db))
        e("s_and_b32 s%d, s%d, 3" % (sT2, sT2))
        e("s_lshl_b32 s%d, s%d, 7" % (sT2, sT2))
        e("s_add_u32 s%d, s%d, s%d" % (sKc[db], sKb, sT2))
    e("s_mul_i32 s%d, s%d, %d" % (sWOb, sH, 256 * 896))
    e("s_mul_i32 s%d, s%d, 224" % (sT, sW))
    e("s_add_u32 s%d, s%d, s%d" % (sWOb, sWOb, sT))
    e("s_lshl_b32 s%d, s2, 2" % sT)
    e("s_add_u32 s%d, s%d, s%d" % (sT, sT, sW))
    e("s_mul_i32 s%d, s%d, %d" % (sPb, sT, 15 * 1024))

    cm("DMA voffsets")
    r8, p8 = vT0, vT1
    e("v_lshrrev_b32 v%d, 3, v%d" % (r8, vLane))
    e("v_and_b32 v%d, 7, v%d" % (p8, vLane))
    e("v_lshrrev_b32 v%d, 1, v%d" % (vT2, r8))
    e("v_xor_b32 v%d, v%d, v%d" % (vT3, p8, vT2))
    e("v_lshlrev_b32 v%d, 4, v%d" % (vA0, vT3))
    e("v_xor_b32 v%d, 64, v%d" % (vA1, vA0))
    e("v_mul_u32_u24 v%d, 896, v%d" % (vA2, r8))
    e("v_add_u32 v%d, v%d, v%d" % (vDX[0], vA2, vA0))
    e("v_add_u32 v%d, v%d, v%d" % (vDX[1], vA2, vA1))
    e("v_lshlrev_b32 v%d, 9, v%d" % (vA2, r8))
    e("v_add_u32 v%d, v%d, v%d" % (vDK[0], vA2, vA0))
    e("v_add_u32 v%d, v%d, v%d" % (vDK[1], vA2, vA1))
    e("v_and_b32 v%d, 1, v%d" % (vT3, vT2))
    e("v_lshlrev_b32 v%d, 2, v%d" % (vT3, vT3))
    e("v_xor_b32 v%d, v%d, v%d" % (vT3, p8, vT3))
    e("v_lshlrev_b32 v%d, 4, v%d" % (vT3, vT3))
    e("v_add_u32 v%d, v%d, v%d" % (vDV, vA2, vT3))
    e("v_lshlrev_b32 v%d, 13, v%d" % (vA2, r8))
    e("v_add_u32 v%d, v%d, v%d" % (vDWQ, vA2, vT3))
    for n in range(7):
        e("v_add_u32 v%d, %d, v%d" % (vT0, 64 * n, vLane))
        e("v_mul_u32_u24 v%d, 4682, v%d" % (vT1, vT0))
        e("v_lshrrev_b32 v%d, 16, v%d" % (vT1, vT1))
        e("v_mul_u32_u24 v%d, 14, v%d" % (vT2, vT1))
        e("v_sub_u32 v%d, v%d, v%d" % (vT2, vT0, vT2))
        e("v_mul_u32_u24 v%d, 896, v%d" % (vT1, vT1))
        e("v_lshlrev_b32 v%d, 4, v%d" % (vT2, vT2))
        e("v_add_u32 v%d, v%d, v%d" % (vDWO[n], vT1, vT2))
    e("s_nop 4")

    st = Stream()
    for j in range(14): st.add('wq', j, 4096)
    for kt in range(4):
        for db in range(4): st.add('k', (kt, db), 4096)
    for j in range(16): st.add('v', j, 4096)
    for t in range(8): st.add('wo', t, 7168)
    C_WQ, C_K, C_V, C_WO = 0, 14, 30, 46

    cm("L2 warm-up prefetch (wq)")
    e("s_lshl_b32 s60, s%d, 1" % sB)
    e("s_add_u32 s60, s60, s%d" % sHalf)
    e("s_mul_i32 s62, s60, 28")
    e("s_mul_i32 s63, s%d, 7" % sW)
    e("s_add_u32 s62, s62, s63")
    e("s_lshl_b32 s62, s62, 13")
    e("s_lshl_b32 s63, s%d, 9" % sH)
    e("s_add_u32 s62, s62, s63")
    e("v_lshlrev_b32 v%d, 13, v%d" % (vT0, vHf))
    e("v_lshl_add_u32 v%d, v%d, 4, v%d" % (vT0, vQ32, vT0))
    for k in range(4):
        e("s_add_u32 s100, s62, %d" % (min(k * 2, 5) * 8192))
        e("buffer_load_dwordx4 v[%d:%d], v%d, s[%d:%d], s100 offen" % (ACC + 64 + 4 * k, ACC + 64 + 4 * k + 3, vT0, sWQ, sWQ + 3))
    st.vm_issued += 4
    e("s_lshl_b32 s63, s%d, 8" % sH)
    e("s_lshl_b32 s100, s60, 4")
    e("s_add_u32 s63, s63, s100")
    e("s_mul_i32 s63, s63, 896")
    e("s_mul_i32 s100, s%d, 3584" % sW)
    e("s_add_u32 s101, s63, s100")
    cm("x tile DMA")
    e("s_mul_i32 s%d, s%d, 14" % (sT2, sW))
    for k in range(14):
        e("s_add_u32 s60, s%d, %d" % (sT2, k))
        e("s_lshr_b32 s61, s60, 3")
        e("s_and_b32 s62, s60, 7")
        e("s_lshl_b32 s63, s60, 10")
        e("s_add_u32 m0, s63, %d" % SH)
        e("s_mul_i32 s63, s62, %d" % (8 * 896))
        e("s_lshl_b32 s61, s61, 7")
        e("s_add_u32 s63, s63, s61")
        e("s_add_u32 s63, s63, s%d" % sXb)
        e("buffer_load_dwordx4 v%d, s[%d:%d], s63 offen lds" % (vDX[k & 1], sX, sX + 3))
        st.vm_issued += 1
    x_last = st.vm_issued
    st.release(-1)
    st.emit_all()

    cm("LDS read address regs")
    e("v_lshrrev_b32 v%d, 1, v%d" % (vT0, vQ32))
    e("v_and_b32 v%d, 7, v%d" % (vT0, vT0))
    e("v_lshlrev_b32 v%d, 7, v%d" % (vT1, vQ32))
    for k in range(4):
        e("v_add_u32 v%d, %d, v%d" % (vT2, 2 * k, vHf))
        e("v_xor_b32 v%d, v%d, v%d" % (vT2, vT2, vT0))
        e("v_lshl_add_u32 v%d, v%d, 4, v%d" % (vT2, vT2, vT1))
        e("v_add_u32 v%d, %d, v%d" % (vXK[k], SH, vT2))
        e("v_add_u32 v%d, s%d, v%d" % (vKA[k], sRing, vT2))
    e("v_lshrrev_b32 v%d, 4, v%d" % (vT0, vLane))
    e("v_and_b32 v%d, 1, v%d" % (vT0, vT0))
    e("v_and_b32 v%d, 15, v%d" % (vT1, vLane))
    e("v_lshrrev_b32 v%d, 2, v%d" % (vT2, vT1))
    e("v_and_b32 v%d, 3, v%d" % (vT3, vT1))
    e("v_lshl_add_u32 v%d, v%d, 3, v%d" % (vA0, vHf, vT2))
    e("v_lshlrev_b32 v%d, 7, v%d" % (vA0, vA0))
    e("v_lshrrev_b32 v%d, 1, v%d" % (vA1, vT3))
    e("v_lshl_add_u32 v%d, v%d, 1, v%d" % (vA1, vT0, vA1))
    e("v_lshrrev_b32 v%d, 1, v%d" % (vA2, vT2))
    e("v_lshlrev_b32 v%d, 2, v%d" % (vA2, vA2))
    e("v_xor_b32 v%d, v%d, v%d" % (vA1, vA1, vA2))
    e("v_lshl_add_u32 v%d, v%d, 4, v%d" % (vA0, vA1, vA0))
    e("v_and_b32 v%d, 1, v%d" % (vA1, vT3))
    e("v_lshl_add_u32 v%d, v%d, 3, v%d" % (vA0, vA1, vA0))
    e("v_add_u32 v%d, s%d, v%d" % (vTR[0], sRing, vA0))
    e("v_xor_b32 v%d, 64, v%d" % (vTR[1], vTR[0]))
    e("v_lshrrev_b32 v%d, 4, v%d" % (vA0, vLane))
    e("v_lshl_add_u32 v%d, v%d, 2, v%d" % (vA0, vA0, vT2))
    e("v_mul_u32_u24 v%d, 224, v%d" % (vA0, vA0))
    e("v_lshl_add_u32 v%d, v%d, 3, v%d" % (vA0, vT3, vA0))
    e("v_add_u32 v%d, s%d, v%d" % (vWOr, sRing, vA0))

    e("s_waitcnt vmcnt(%d)" % (st.vm_issued - x_last))
    e("s_barrier")

    stamp()
    cm("==== phase 1: Q^T = wq^T x^T ====")
    def p1_reads(j, buf):
        base = FB + buf * 32
        off = st.chunks[C_WQ + j]['off']
        for ks in range(2):
            for D in range(2):
                for a in range(2):
                    r = base + (ks * 2 + D) * 4 + a * 2
                    e("ds_read_b64_tr_b16 %s, v%d offset:%d" % (vr(r, 2), vTR[D], off + (16 * ks + 4 * a) * 128))
            s = 2 * j + ks
            for t in range(2):
                r = base + 16 + (ks * 2 + t) * 4
                e("ds_read_b128 %s, v%d offset:%d" % (vr(r, 4), vXK[s & 3], (s >> 2) * 8192 + t * 4096))
    def p1_mfma(j, buf, half):
        base = FB + buf * 32
        ks = half
        for D in range(2):
            for t in range(2):
                acc = ACC + (D * 2 + t) * 16
                c = "0" if (j == 0 and ks == 0) else vr(acc, 16)
                e("v_mfma_f32_32x32x16_bf16 %s, %s, %s, %s" % (vr(acc, 16), vr(base + (ks * 2 + D) * 4, 4), vr(base + 16 + (ks * 2 + t) * 4, 4), c))
                if (D * 2 + t) % 2 == 1:
                    st.emit_one()
    st.wait(C_WQ + 0)
    p1_reads(0, 0)
    for j in range(14):
        e("s_waitcnt lgkmcnt(0)")
        st.release(C_WQ + j)
        p1_mfma(j, j & 1, 0)
        if j + 1 < 14:
            st.wait(C_WQ + j + 1)
            p1_reads(j + 1, (j + 1) & 1)
        p1_mfma(j, j & 1, 1)
    st.emit_all()
    stamp()
    e("v_lshlrev_b32 v%d, 4, v%d" % (vT1, vLane))
    for k in range(4):
        e("s_add_u32 s100, s101, %d" % (min(k * 1024, 2560)))
        e("buffer_load_dwordx4 v[%d:%d], v%d, s[%d:%d], s100 offen" % (ACC + 64 + 4 * k, ACC + 64 + 4 * k + 3, vT1, sWO, sWO + 3))
    st.vm_issued += 4
    e("s_barrier")
    e("s_nop 15")
    e("s_lshr_b32 s%d, s%d, 1" % (sT, sW))
    e("s_lshl_b32 s%d, s%d, 8" % (sT, sT))
    e("s_add_u32 s%d, s%d, %d" % (sT, sT, SH))
    e("s_and_b32 s%d, s%d, 1" % (sT2, sW))
    e("s_lshl_b32 s%d, s%d, 3" % (sT2, sT2))
    e("v_and_b32 v%d, 15, v%d" % (vT0, vQ32))
    e("v_xor_b32 v%d, s%d, v%d" % (vT0, sT2, vT0))
    e("v_lshlrev_b32 v%d, 4, v%d" % (vT0, vT0))
    e("v_lshl_add_u32 v%d, v%d, 9, v%d" % (vT0, vQ32, vT0))
    e("v_lshl_add_u32 v%d, v%d, 3, v%d" % (vT0, vHf, vT0))
    e("v_add_u32 v%d, s%d, v%d" % (vA0, sT, vT0))
    for D in range(2):
        for t in range(2):
            acc = ACC + (D * 2 + t) * 16
            for g in range(4):
                e("v_cvt_pk_bf16_f32 v%d, v%d, v%d" % (vS + 0, acc + 4 * g, acc + 4 * g + 1))
                e("v_cvt_pk_bf16_f32 v%d, v%d, v%d" % (vS + 1, acc + 4 * g + 2, acc + 4 * g + 3))
                e("v_xor_b32 v%d, %d, v%d" % (vA1, (4 * D + g) << 4, vA0))
                e("ds_write_b64 v%d, %s offset:%d" % (vA1, vr(vS, 2), t * 16384))
    barrier()
    e("v_and_b32 v%d, 15, v%d" % (vT0, vQ32))
    e("v_xor_b32 v%d, v%d, v%d" % (vT0, vHf, vT0))
    e("v_lshlrev_b32 v%d, 4, v%d" % (vT0, vT0))
    e("v_lshl_add_u32 v%d, v%d, 9, v%d" % (vT0, vQ32, vT0))
    e("v_add_u32 v%d, %d, v%d" % (vA0, SH, vT0))
    for db in range(4):
        e("s_add_u32 s%d, s%d, %d" % (sT2, sW, db))
        e("s_and_b32 s%d, s%d, 3" % (sT2, sT2))
        e("s_lshl_b32 s%d, s%d, 7" % (sT2, sT2))
        e("v_xor_b32 v%d, s%d, v%d" % (vA1, sT2, vA0))
        for k in range(4):
            sidx = 4 * db + k
            e("v_xor_b32 v%d, %d, v%d" % (vA2, k << 5, vA1))
            for t in range(2):
                e("ds_read_b128 %s, v%d offset:%d" % (ar((sidx * 2 + t) * 4, 4), vA2, t * 16384))
        e("s_waitcnt lgkmcnt(0)")

    stamp()
    cm("==== phase 2 ====")
    def p2_reads(c, buf):
        base = FB + buf * 32
        off = st.chunks[C_K + c]['off']
        for k in range(4):
            e("ds_read_b128 %s, v%d offset:%d" % (vr(base + 4 * k, 4), vKA[k], off))
    VQ = []
    mreg = [vS + 0, vS + 2]
    lreg = [vS + 1, vS + 3]
    tmpm = [vS + 4, vS + 5]
    def accreg(kt, t, i): return ACC + (kt * 2 + t) * 16 + i
    mk = [[FB + 16 + kt * 2 + t for t in range(2)] for kt in range(4)]
    lk = [[FB + 24 + kt * 2 + t for t in range(2)] for kt in range(4)]
    nmc = [FB + 56, FB + 58]
    sp = [FB + 48, FB + 50]
    def round_max(kt):
        out = []
        for t in range(2):
            for i in range(0, 16, 2):
                a0, a1 = accreg(kt, t, i), accreg(kt, t, i + 1)
                out.append("v_cvt_pk_bf16_f32 v%d, v%d, v%d" % (a1, a0, a1))
                out.append("v_lshlrev_b32 v%d, 16, v%d" % (a0, a1))
                out.append("v_and_b32 v%d, s%d, v%d" % (a1, sMask, a1))
        for t in range(2):
            out.append("v_max_f32 v%d, v%d, v%d" % (mk[kt][t], accreg(kt, t, 0), accreg(kt, t, 1)))
        for i in range(2, 16, 2):
            for t in range(2):
                out.append("v_max3_f32 v%d, v%d, v%d, v%d" % (mk[kt][t], mk[kt][t], accreg(kt, t, i), accreg(kt, t, i + 1)))
        for t in range(2):
            out.append("v_mul_f32 v%d, s%d, v%d" % (nmc[t], sC, mk[kt][t]))
        for i in range(0, 16, 2):
            for t in range(2):
                a = accreg(kt, t, i)
                out.append("v_pk_fma_f32 %s, %s, s[94:95], %s op_sel_hi:[1,0,0] neg_lo:[0,0,1] neg_hi:[0,0,1]" % (vr(a, 2), vr(a, 2), vr(nmc[t], 2)))
            for t in range(2):
                a = accreg(kt, t, i)
                out.append("v_exp_f32 v%d, v%d" % (a, a))
                out.append("v_exp_f32 v%d, v%d" % (a + 1, a + 1))
        for t in range(2):
            out.append("v_pk_add_f32 %s, %s, %s" % (vr(sp[t], 2), vr(accreg(kt, t, 0), 2), vr(accreg(kt, t, 2), 2)))
        for i in range(4, 16, 2):
            for t in range(2):
                out.append("v_pk_add_f32 %s, %s, %s" % (vr(sp[t], 2), vr(sp[t], 2), vr(accreg(kt, t, i), 2)))
        for t in range(2):
            out.append("v_add_f32 v%d, v%d, v%d" % (lk[kt][t], sp[t], sp[t] + 1))
        return out
    def p2_mfma(c, buf, half):
        base = FB + buf * 32
        kt, db = divmod(c, 4)
        if db == 1 and half == 0 and kt > 0:
            VQ.extend(round_max(kt - 1))
        for k in range(2 * half, 2 * half + 2):
            s = 4 * db + k
            for t in range(2):
                acc = ACC + (kt * 2 + t) * 16
                cc = "0" if s == 0 else vr(acc, 16)
                e("v_mfma_f32_32x32x16_bf16 %s, %s, %s, %s" % (vr(acc, 16), vr(base + 4 * k, 4), ar((s * 2 + t) * 4, 4), cc))
                for _ in range(int(os.environ.get("VPM", "5"))):
                    if VQ: e(VQ.pop(0))
            st.emit_one()
    st.wait(C_K + 0)
    p2_reads(0, 0)
    for c in range(16):
        e("s_waitcnt lgkmcnt(0)")
        st.release(C_K + c)
        p2_mfma(c, c & 1, 0)
        if c + 1 < 16:
            st.wait(C_K + c + 1)
            p2_reads(c + 1, (c + 1) & 1)
        p2_mfma(c, c & 1, 1)
    st.emit_all()
    e("s_nop 15")

    stamp()
    cm("==== phase 3: softmax ====")
    while VQ: e(VQ.pop(0))
    for x_ in round_max(3): e(x_)
    tmp = [[vS + 6 + kt * 2 + t for t in range(2)] for kt in range(4)]
    for t in range(2):
        e("v_max3_f32 v%d, v%d, v%d, v%d" % (mreg[t], mk[0][t], mk[1][t], mk[2][t]))
    for t in range(2):
        e("v_max_f32 v%d, v%d, v%d" % (mreg[t], mreg[t], mk[3][t]))
    for kt in range(4):
        for t in range(2):
            e("v_sub_f32 v%d, v%d, v%d" % (tmp[kt][t], mk[kt][t], mreg[t]))
    for kt in range(4):
        for t in range(2):
            e("v_mul_f32 v%d, s%d, v%d" % (tmp[kt][t], sC, tmp[kt][t]))
    for kt in range(4):
        for t in range(2):
            e("v_exp_f32 v%d, v%d" % (tmp[kt][t], tmp[kt][t]))
    e("s_nop 0")
    for t in range(2):
        e("v_mul_f32 v%d, v%d, v%d" % (lreg[t], tmp[0][t], lk[0][t]))
    for kt in range(1, 4):
        for t in range(2):
            e("v_fmac_f32 v%d, v%d, v%d" % (lreg[t], tmp[kt][t], lk[kt][t]))
    e("s_lshl_b32 s%d, s%d, 10" % (sT, sW))
    e("s_add_u32 s%d, s%d, %d" % (sT, sT, SH))
    e("v_lshlrev_b32 v%d, 3, v%d" % (vT0, vQ32))
    e("v_lshl_add_u32 v%d, v%d, 9, v%d" % (vT1, vHf, vT0))
    e("v_add_u32 v%d, s%d, v%d" % (vA0, sT, vT1))
    e("v_add_u32 v%d, %d, v%d" % (vA1, SH, vT0))
    for t in range(2):
        e("ds_write_b64 v%d, %s offset:%d" % (vA0, vr(mreg[t], 2), t * 256))
    barrier()
    ML = FB + 32
    for t in range(2):
        for k in range(8):
            e("ds_read_b64 %s, v%d offset:%d" % (vr(ML + (t * 8 + k) * 2, 2), vA1, k * 512 + t * 256))
        e("s_waitcnt lgkmcnt(0)")
    barrier()
    fk = [[FB + (kt * 2 + t) * 2 for t in range(2)] for kt in range(4)]
    for t in range(2):
        mm = vS + 22 + t
        ms = [ML + (t * 8 + k) * 2 for k in range(8)]
        e("v_max3_f32 v%d, v%d, v%d, v%d" % (mm, ms[0], ms[1], ms[2]))
        e("v_max3_f32 v%d, v%d, v%d, v%d" % (mm, mm, ms[3], ms[4]))
        e("v_max3_f32 v%d, v%d, v%d, v%d" % (mm, mm, ms[5], ms[6]))
        e("v_max_f32 v%d, v%d, v%d" % (mm, mm, ms[7]))
        for k in range(8):
            e("v_sub_f32 v%d, v%d, v%d" % (ms[k], ms[k], mm))
            e("v_mul_f32 v%d, s%d, v%d" % (ms[k], sC, ms[k]))
            e("v_exp_f32 v%d, v%d" % (ms[k], ms[k]))
        e("s_nop 0")
        lg = vS + 16 + t
        e("v_mul_f32 v%d, v%d, v%d" % (lg, ms[0], ms[0] + 1))
        for k in range(1, 8):
            e("v_fmac_f32 v%d, v%d, v%d" % (lg, ms[k], ms[k] + 1))
        e("v_rcp_f32 v%d, v%d" % (lg, lg))
        for kt in range(4):
            e("v_sub_f32 v%d, v%d, v%d" % (fk[kt][t], mk[kt][t], mm))
        for kt in range(4):
            e("v_mul_f32 v%d, s%d, v%d" % (fk[kt][t], sC, fk[kt][t]))
        for kt in range(4):
            e("v_exp_f32 v%d, v%d" % (fk[kt][t], fk[kt][t]))
        e("s_nop 0")
        for kt in range(4):
            e("v_mul_f32 v%d, v%d, v%d" % (fk[kt][t], fk[kt][t], lg))
    e("s_lshl_b32 s%d, s%d, 8" % (sT, sW))
    e("s_add_u32 s%d, s%d, %d" % (sT, sT, SH))
    e("v_and_b32 v%d, 15, v%d" % (vT0, vQ32))
    e("v_lshlrev_b32 v%d, 4, v%d" % (vT0, vT0))
    e("v_lshl_add_u32 v%d, v%d, 10, v%d" % (vT0, vQ32, vT0))
    e("v_lshl_add_u32 v%d, v%d, 3, v%d" % (vT1, vHf, vT0))
    e("v_add_u32 v%d, s%d, v%d" % (vA0, sT, vT1))
    for kt in range(4):
        for g in range(4):
            e("v_xor_b32 v%d, %d, v%d" % (vA1, (4 * kt + g) << 4, vA0))
            for t in range(2):
                a = accreg(kt, t, 4 * g)
                for i in range(0, 4, 2):
                    e("v_pk_mul_f32 %s, %s, %s op_sel_hi:[1,0]" % (vr(a + i, 2), vr(a + i, 2), vr(fk[kt][t], 2)))
                pk = vS + 18 + 2 * t
                e("v_cvt_pk_bf16_f32 v%d, v%d, v%d" % (pk, a, a + 1))
                e("v_cvt_pk_bf16_f32 v%d, v%d, v%d" % (pk + 1, a + 2, a + 3))
                e("ds_write_b64 v%d, %s offset:%d" % (vA1, vr(pk, 2), t * 32768))
    vPR = [vS + 0, vS + 1, vS + 2, vS + 3, vS + 4, vS + 5, vS + 6, vS + 7]
    e("v_and_b32 v%d, 15, v%d" % (vT0, vQ32))
    e("v_xor_b32 v%d, v%d, v%d" % (vT0, vHf, vT0))
    e("v_lshlrev_b32 v%d, 4, v%d" % (vT0, vT0))
    e("v_lshl_add_u32 v%d, v%d, 10, v%d" % (vT0, vQ32, vT0))
    e("v_add_u32 v%d, %d, v%d" % (vA2, SH, vT0))
    e("s_waitcnt lgkmcnt(0)")
    for k in range(8):
        e("v_xor_b32 v%d, %d, v%d" % (vPR[k], (2 * k) << 4, vA2))
    e("s_barrier")

    stamp()
    cm("==== phase 4 ====")
    def p4_reads(j, buf):
        base = FB + buf * 32
        off = st.chunks[C_V + j]['off']
        for ks in range(2):
            for D in range(2):
                for a in range(2):
                    r = base + (ks * 2 + D) * 4 + a * 2
                    e("ds_read_b64_tr_b16 %s, v%d offset:%d" % (vr(r, 2), vTR[D], off + (16 * ks + 4 * a) * 128))
            s = 2 * j + ks
            for t in range(2):
                r = base + 16 + (ks * 2 + t) * 4
                e("ds_read_b128 %s, v%d offset:%d" % (vr(r, 4), vPR[s & 7], (s >> 3) * 256 + t * 32768))
    def p4_mfma(j, buf, half):
        base = FB + buf * 32
        ks = half
        for D in range(2):
            for t in range(2):
                acc = ACC + (D * 2 + t) * 16
                c = "0" if (j == 0 and ks == 0) else vr(acc, 16)
                e("v_mfma_f32_32x32x16_bf16 %s, %s, %s, %s" % (vr(acc, 16), vr(base + (ks * 2 + D) * 4, 4), vr(base + 16 + (ks * 2 + t) * 4, 4), c))
                if (D * 2 + t) % 2 == 1:
                    st.emit_one()
    st.wait(C_V + 0)
    p4_reads(0, 0)
    for j in range(16):
        e("s_waitcnt lgkmcnt(0)")
        st.release(C_V + j)
        p4_mfma(j, j & 1, 0)
        if j + 1 < 16:
            st.wait(C_V + j + 1)
            p4_reads(j + 1, (j + 1) & 1)
        p4_mfma(j, j & 1, 1)
    st.emit_all()
    stamp()
    e("s_barrier")
    e("s_nop 15")
    e("s_lshr_b32 s%d, s%d, 1" % (sT, sW))
    e("s_lshl_b32 s%d, s%d, 8" % (sT, sT))
    e("s_add_u32 s%d, s%d, %d" % (sT, sT, SH))
    e("s_and_b32 s%d, s%d, 1" % (sT2, sW))
    e("s_lshl_b32 s%d, s%d, 3" % (sT2, sT2))
    e("v_and_b32 v%d, 15, v%d" % (vT0, vQ32))
    e("v_xor_b32 v%d, v%d, v%d" % (vT0, vHf, vT0))
    e("v_xor_b32 v%d, s%d, v%d" % (vT0, sT2, vT0))
    e("v_lshlrev_b32 v%d, 4, v%d" % (vT0, vT0))
    e("v_lshl_add_u32 v%d, v%d, 9, v%d" % (vT0, vQ32, vT0))
    e("v_add_u32 v%d, s%d, v%d" % (vA0, sT, vT0))
    for D in range(2):
        for t in range(2):
            acc = ACC + (D * 2 + t) * 16
            for g in range(4):
                e("v_cvt_pk_bf16_f32 v%d, v%d, v%d" % (vS + 8, acc + 4 * g, acc + 4 * g + 1))
                e("v_cvt_pk_bf16_f32 v%d, v%d, v%d" % (vS + 9, acc + 4 * g + 2, acc + 4 * g + 3))
                e("v_xor_b32 v%d, %d, v%d" % (vA1, (4 * D + 2 * (g & 1)) << 4, vA0))
                e("ds_write_b64 v%d, %s offset:%d" % (vA1, vr(vS + 8, 2), t * 16384 + (g >> 1) * 8))
    barrier()
    e("v_and_b32 v%d, 15, v%d" % (vT0, vLane))
    e("v_lshrrev_b32 v%d, 4, v%d" % (vT1, vLane))
    e("v_xor_b32 v%d, v%d, v%d" % (vT1, vT1, vT0))
    e("v_lshlrev_b32 v%d, 4, v%d" % (vT1, vT1))
    e("v_lshl_add_u32 v%d, v%d, 9, v%d" % (vT1, vT0, vT1))
    e("v_add_u32 v%d, %d, v%d" % (vA0, SH, vT1))
    for T3 in range(4):
        e("v_xor_b32 v%d, %d, v%d" % (vA1, (4 * T3) << 4, vA0))
        for Th in range(2):
            T = Th * 4 + T3
            for qt in range(4):
                e("ds_read_b128 %s, v%d offset:%d" % (ar((T * 4 + qt) * 4, 4), vA1, qt * 8192 + Th * 256))
        e("s_waitcnt lgkmcnt(0)")

    stamp()
    cm("==== phase 5 ====")
    def p5_reads(T, buf):
        base = FB + buf * 32
        off = st.chunks[C_WO + T]['off']
        for ct in range(7):
            for a in range(2):
                e("ds_read_b64_tr_b16 %s, v%d offset:%d" % (vr(base + ct * 4 + a * 2, 2), vWOr, off + a * 16 * 224 + ct * 32))
    def p5_mfma(T, buf, cts):
        base = FB + buf * 32
        for ct in cts:
            for qt in range(4):
                acc = ACC + (ct * 4 + qt) * 4
                c = "0" if T == 0 else vr(acc, 4)
                e("v_mfma_f32_16x16x32_bf16 %s, %s, %s, %s" % (vr(acc, 4), vr(base + ct * 4, 4), ar((T * 4 + qt) * 4, 4), c))
            st.emit_one()
    st.wait(C_WO + 0)
    p5_reads(0, 0)
    for T in range(8):
        e("s_waitcnt lgkmcnt(0)")
        st.release(C_WO + T)
        p5_mfma(T, T & 1, [0, 1, 2, 3])
        if T + 1 < 8:
            st.wait(C_WO + T + 1)
            p5_reads(T + 1, (T + 1) & 1)
        p5_mfma(T, T & 1, [4, 5, 6])
    st.emit_all()
    e("s_nop 15")
    stamp()
    e("v_lshlrev_b32 v%d, 4, v%d" % (vA0, vLane))
    mx = [vS + 0, vS + 1]
    e("v_max_f32 v%d, |v%d|, |v%d|" % (mx[0], ACC, ACC + 1))
    e("v_max_f32 v%d, |v%d|, |v%d|" % (mx[1], ACC + 2, ACC + 3))
    for i in range(4, 112, 4):
        e("v_max3_f32 v%d, |v%d|, |v%d|, v%d" % (mx[0], ACC + i, ACC + i + 1, mx[0]))
        e("v_max3_f32 v%d, |v%d|, |v%d|, v%d" % (mx[1], ACC + i + 2, ACC + i + 3, mx[1]))
    e("v_max_f32 v%d, v%d, v%d" % (mx[0], mx[0], mx[1]))
    e("v_bfe_u32 v%d, v%d, 23, 8" % (mx[0], mx[0]))
    e("v_max_u32 v%d, 15, v%d" % (mx[0], mx[0]))
    e("v_min_u32 v%d, 0xfe, v%d" % (mx[0], mx[0]))
    e("v_sub_u32 v%d, 0x10c, v%d" % (vS + 2, mx[0]))
    e("v_lshlrev_b32 v%d, 23, v%d" % (vS + 2, vS + 2))
    e("v_subrev_u32 v%d, 14, v%d" % (vS + 3, mx[0]))
    e("v_lshlrev_b32 v%d, 23, v%d" % (vS + 3, vS + 3))
    e("v_lshlrev_b32 v%d, 2, v%d" % (vA1, vLane))
    e("s_add_u32 s%d, s%d, %d" % (sT, sPb, 14 * 1024))
    e("buffer_store_dword v%d, v%d, s[%d:%d], s%d offen%s" % (vS + 3, vA1, sWS, sWS + 3, sT, STPOL))
    for tp in range(14):
        acc = ACC + tp * 8
        for i in range(8):
            e("v_mul_f32 v%d, v%d, v%d" % (acc + i, acc + i, vS + 2))
        for i in range(4):
            e("v_cvt_pk_f16_f32 v%d, v%d, v%d" % (acc + i, acc + 2 * i, acc + 2 * i + 1))
        if tp % 4 == 0:
            e("s_add_u32 s%d, s%d, %d" % (sT, sPb, tp * 1024))
        e("buffer_store_dwordx4 %s, v%d, s[%d:%d], s%d offen offset:%d%s" % (vr(acc, 4), vA0, sWS, sWS + 3, sT, (tp % 4) * 1024, STPOL))
    e("s_waitcnt vmcnt(0)")
    stamp()
    if STAMPS:
        i = nstamp[0]; nstamp[0] += 2
        e("s_mov_b64 s[%d:%d], s[92:93]" % (64 + 2 * i, 65 + 2 * i))
        e("s_memrealtime s[%d:%d]" % (66 + 2 * i, 67 + 2 * i))
        e("s_waitcnt lgkmcnt(0)")
    stamp_flush()
    lab("L_main_end")
    e("s_endpgm")

def gen_reduce():
    L.append(".p2align 8")
    L.append(".globl reduce_kernel")
    L.append(".type reduce_kernel,@function")
    lab("reduce_kernel")
    e("s_cmp_ge_u32 s2, 224")
    e("s_cbranch_scc1 L_red_end")
    e("s_load_dwordx2 s[4:5], s[0:1], 40")
    e("s_load_dwordx2 s[6:7], s[0:1], 56")
    e("v_lshrrev_b32 v1, 6, v0")
    e("v_and_b32 v2, 63, v0")
    e("s_and_b32 s20, s2, 7")
    e("v_readfirstlane_b32 s21, v1")
    e("s_lshr_b32 s22, s2, 3")
    e("s_cmp_ge_u32 s22, 14")
    e("s_cselect_b32 s23, 1, 0")
    e("s_mul_i32 s24, s23, 14")
    e("s_sub_u32 s24, s22, s24")
    e("s_waitcnt lgkmcnt(0)")
    srd(8, 4, 8 * 128 * 448 * 2)
    srd(12, 6, 256 * 4 * 15 * 1024)
    e("s_lshl_b32 s25, s20, 1")
    e("s_add_u32 s25, s25, s23")
    e("s_lshl_b32 s25, s25, 6")
    e("s_add_u32 s25, s25, s21")
    e("s_mul_i32 s25, s25, 15")
    e("s_add_u32 s32, s25, 14")
    e("s_lshl_b32 s32, s32, 10")
    e("s_add_u32 s25, s25, s24")
    e("s_lshl_b32 s25, s25, 10")
    e("v_lshlrev_b32 v6, 2, v2")
    e("v_lshlrev_b32 v3, 4, v2")
    e("s_mov_b32 s31, 0xffff0000")
    e("s_nop 4")
    for h in range(16):
        e("s_add_u32 s26, s25, %d" % (h * 4 * 15 * 1024))
        e("buffer_load_dwordx4 v[%d:%d], v3, s[12:15], s26 offen" % (8 + 4 * h, 11 + 4 * h))
        e("s_add_u32 s26, s32, %d" % (h * 4 * 15 * 1024))
        e("buffer_load_dword v%d, v6, s[12:15], s26 offen" % (80 + h))
    e("s_and_b32 s27, s24, 1")
    e("s_lshl_b32 s27, s27, 1")
    e("s_lshr_b32 s28, s24, 1")
    e("s_lshl_b32 s29, s20, 7")
    e("s_lshl_b32 s30, s23, 6")
    e("s_add_u32 s29, s29, s30")
    e("s_lshl_b32 s30, s27, 4")
    e("s_add_u32 s29, s29, s30")
    e("s_mul_i32 s29, s29, 896")
    e("s_mul_i32 s30, s21, 224")
    e("s_add_u32 s29, s29, s30")
    e("s_lshl_b32 s30, s28, 5")
    e("s_add_u32 s29, s29, s30")
    e("v_and_b32 v4, 15, v2")
    e("v_mul_u32_u24 v4, 896, v4")
    e("v_lshrrev_b32 v5, 4, v2")
    e("v_lshl_add_u32 v4, v5, 3, v4")
    for i in range(8): e("v_mov_b32 v%d, 0" % (72 + i))
    for h in range(16):
        e("s_waitcnt vmcnt(%d)" % (30 - 2 * h))
        for i in range(4):
            e("v_fma_mix_f32 v%d, v%d, v%d, v%d op_sel_hi:[1,0,0]" % (72 + 2 * i, 8 + 4 * h + i, 80 + h, 72 + 2 * i))
            e("v_fma_mix_f32 v%d, v%d, v%d, v%d op_sel:[1,0,0] op_sel_hi:[1,0,0]" % (73 + 2 * i, 8 + 4 * h + i, 80 + h, 73 + 2 * i))
    e("v_cvt_pk_bf16_f32 v8, v72, v73")
    e("v_cvt_pk_bf16_f32 v9, v74, v75")
    e("v_cvt_pk_bf16_f32 v10, v76, v77")
    e("v_cvt_pk_bf16_f32 v11, v78, v79")
    e("buffer_store_dwordx2 v[8:9], v4, s[8:11], s29 offen")
    e("s_add_u32 s29, s29, %d" % (16 * 896))
    e("buffer_store_dwordx2 v[10:11], v4, s[8:11], s29 offen")
    e("s_waitcnt vmcnt(0)")
    lab("L_red_end")
    e("s_endpgm")

HEADER = """; Kernarg layout for this problem (64 bytes, ptrs only, base s[0:1]):
;   offset   0: d_in[0] x  shape=(8, 128, 448) dtype=bfloat16
;   offset   8: d_in[1] k_cache  shape=(8, 16, 512, 256) dtype=bfloat16
;   offset  16: d_in[2] v_cache  shape=(8, 16, 512, 256) dtype=bfloat16
;   offset  24: d_in[3] wq  shape=(448, 4096) dtype=bfloat16
;   offset  32: d_in[4] wo  shape=(4096, 448) dtype=bfloat16
;   offset  40: d_out     shape=(8, 128, 448) dtype=bfloat16
;   offset  48: d_debug   256 bytes
;   offset  56: d_ws      268435456 bytes workspace
; generated by gen.py
; @launch kernel=%s_kernel grid=(256,1,1) block=(256,1,1) lds=%d
; @launch kernel=reduce_kernel grid=(224,1,1) block=(256,1,1) lds=0
.amdgcn_target "amdgcn-amd-amdhsa--gfx950"
.text
.globl %s_kernel
.p2align 8
.type %s_kernel,@function
""" % (NAME, LDS_TOTAL, NAME, NAME)

FOOTER = """.section .rodata,"a"
.p2align 6
.amdhsa_kernel %s_kernel
  .amdhsa_next_free_vgpr 384
  .amdhsa_next_free_sgpr 102
  .amdhsa_accum_offset 256
  .amdhsa_group_segment_fixed_size 0
  .amdhsa_kernarg_size 64
  .amdhsa_user_sgpr_count 2
  .amdhsa_user_sgpr_kernarg_segment_ptr 1
  .amdhsa_system_sgpr_workgroup_id_x 1
.end_amdhsa_kernel
.p2align 6
.amdhsa_kernel reduce_kernel
  .amdhsa_next_free_vgpr 96
  .amdhsa_next_free_sgpr 40
  .amdhsa_accum_offset 96
  .amdhsa_group_segment_fixed_size 0
  .amdhsa_kernarg_size 64
  .amdhsa_user_sgpr_count 2
  .amdhsa_user_sgpr_kernarg_segment_ptr 1
  .amdhsa_system_sgpr_workgroup_id_x 1
.end_amdhsa_kernel
""" % NAME

gen_main()
gen_reduce()
with open(OUT, "w") as f:
    f.write(HEADER + "\n".join(L) + "\n" + FOOTER)
print("wrote", OUT, len(L), "lines")
```
